```python
import torch

def _softmax(x, axis=-1):
    return torch.softmax(x, dim=axis)
def _gelu(x):
    return torch.nn.functional.gelu(x, approximate="tanh")
def _silu(x):
    return torch.nn.functional.silu(x)
def _sigmoid(x):
    return torch.sigmoid(x)
def _layernorm(x, axis=-1, eps=1e-5):
    m = x.mean(dim=axis, keepdim=True)
    v = x.var(dim=axis, keepdim=True, unbiased=False)
    return (x - m) / torch.sqrt(v + eps)
def _scatter_add(tgt, idx, src, axis=0):
    return tgt.clone().index_add_(axis, idx, src)
def _segment_sum(src, seg, n):
    out = torch.zeros((n,) + src.shape[1:], dtype=src.dtype)
    return out.index_add_(0, seg, src)
def _pad(x, pw):
    flat = tuple(v for pair in reversed(pw) for v in pair)
    return torch.nn.functional.pad(x, flat)

kernel_name = 'recurrent_scan__ssm_conv_h3__geglu_ffn__prompt'

def setup_inputs():

    _w = (lambda a: (lambda t: t.to(torch.bfloat16) if t.is_floating_point() else t)(torch.as_tensor(a)))
    def _A_setup():
        B, S, D = 1, 2048, 1024
        ks = 4
        return {
            "q": _w((lambda *s: torch.randn(*s, dtype=torch.bfloat16) * 0.05)(B, S, D)),
            "k": _w((lambda *s: torch.randn(*s, dtype=torch.bfloat16) * 0.2)(B, S, D)),
            "v": _w((lambda *s: torch.randn(*s, dtype=torch.bfloat16) * 0.2)(B, S, D)),
            "shift_k": _w((lambda *s: torch.randn(*s, dtype=torch.bfloat16) * 0.2)(D, ks) * 0.5),
            "ssm_k": _w((lambda *s: torch.randn(*s, dtype=torch.bfloat16) * 0.2)(D, S) * (1.0 / S ** 0.5)),
            "ssm_D": _w((lambda *s: torch.randn(*s, dtype=torch.bfloat16) * 0.2)(D)),
        }
    _A_in = _A_setup()

    def _B_setup():
        B, S, D, F = 1, 2048, 1024, 3584
        return {
            "x": _w((lambda *s: torch.randn(*s, dtype=torch.bfloat16) * 0.05)(B, S, D)),
            "w_gate": _w((lambda *s: torch.randn(*s, dtype=torch.bfloat16) * 0.1)(D, F)),
            "w_up": _w((lambda *s: torch.randn(*s, dtype=torch.bfloat16) * 0.1)(D, F)),
            "w_down": _w((lambda *s: torch.randn(*s, dtype=torch.bfloat16) * 0.1)(F, D)),
        }
    _B_in = _B_setup()

    return {
        "A_q": _A_in["q"],
        "A_k": _A_in["k"],
        "A_v": _A_in["v"],
        "A_shift_k": _A_in["shift_k"],
        "A_ssm_k": _A_in["ssm_k"],
        "A_ssm_D": _A_in["ssm_D"],
        "B_x": _B_in["x"],
        "B_w_gate": _B_in["w_gate"],
        "B_w_up": _B_in["w_up"],
        "B_w_down": _B_in["w_down"],
    }

def reference(A_q, A_k, A_v, A_shift_k, A_ssm_k, A_ssm_D, B_x, B_w_gate, B_w_up, B_w_down):
    def _A_ref(q, k, v, shift_k, ssm_k, ssm_D):
        B, S, D = q.shape
        ks = shift_k.shape[-1]
        k_pad = _pad(k, ((0, 0), (ks - 1, 0), (0, 0)))
        k_shift = torch.zeros_like(k)
        for t in range(ks):
            k_shift = k_shift + k_pad[:, t:t + S, :] * shift_k[:, ks - 1 - t][None, None, :]
        kv = k_shift * v
        L = 2 * S
        kv_pad = _pad(kv, ((0, 0), (0, S), (0, 0)))
        kf_pad = _pad(ssm_k, ((0, 0), (0, S)))
        kv_f = (lambda x, axes=(-2,-1): torch.fft.rfft2(x.float(), dim=axes))(kv_pad[:, None, :, :], axes=(1, 2))
        kf_f = (lambda x, axes=(-2,-1): torch.fft.rfft2(x.float(), dim=axes))(kf_pad[:, None, :], axes=(1, 2))
        kf_f = (lambda x, *d: x.permute(*d))(kf_f, 1, 2, 0)
        y_f = kv_f * kf_f[None, :, :, :]
        y = (lambda x, s, axes=(-2,-1): torch.fft.irfft2(x, s=s, dim=axes).to(torch.bfloat16))(y_f, (1, L), axes=(1, 2))[:, 0, :S, :]
        y = y + kv * ssm_D[None, None, :]
        return q * y

    def _B_ref(x, w_gate, w_up, w_down):
        return (_gelu(x @ w_gate) * (x @ w_up)) @ w_down

    x = A_q
    xn = _layernorm(x, axis=-1)
    s = _A_ref(xn, A_k, A_v, A_shift_k, A_ssm_k, A_ssm_D)
    g = _silu(_B_ref(xn, B_w_gate, B_w_up, B_w_down))
    return x + s * g
```

```python
HEADER = """.amdgcn_target "amdgcn-amd-amdhsa--gfx950"
.text
"""
class K:
    def __init__(self, name, vgpr=256, agpr=0, sgpr=102, accum=None):
        self.name=name; self.lines=[]; self.vgpr=vgpr; self.agpr=agpr; self.sgpr=sgpr; self.accum=accum
        self._lab=0
    def __call__(self, s):
        for l in s.strip("\n").split("\n"):
            l=l.strip()
            if not l: continue
            if l.endswith(":"): self.lines.append(l)
            else: self.lines.append("    "+l)
    def label(self, base="L"):
        self._lab+=1
        return f"{self.name}_{base}{self._lab}"
    def srd(self, d, b, nbytes):
        self(f"""s_mov_b32 s{d}, s{b}
        s_and_b32 s{d+1}, s{b+1}, 0xffff
        s_mov_b32 s{d+2}, {hex(nbytes)}
        s_mov_b32 s{d+3}, 0x20000""")
    def text(self):
        return f".globl {self.name}\n.p2align 8\n.type {self.name},@function\n{self.name}:\n" + "\n".join(self.lines) + "\n"
    def desc(self):
        acc = self.accum if self.accum is not None else ((self.vgpr+3)//4*4)
        nfv = acc + self.agpr if self.agpr else self.vgpr
        return f""".amdhsa_kernel {self.name}
  .amdhsa_next_free_vgpr {nfv}
  .amdhsa_next_free_sgpr {self.sgpr}
  .amdhsa_accum_offset {acc}
  .amdhsa_group_segment_fixed_size 0
  .amdhsa_kernarg_size 104
  .amdhsa_user_sgpr_count 2
  .amdhsa_user_sgpr_kernarg_segment_ptr 1
  .amdhsa_system_sgpr_workgroup_id_x 1
  .amdhsa_float_denorm_mode_32 3
.end_amdhsa_kernel
"""
def emit(path, launches, kernels, comment=""):
    s = comment
    for (n,g,b,l) in launches:
        s += f"; @launch kernel={n} grid=({g},1,1) block=({b},1,1) lds={l}\n"
    s += HEADER
    for k in kernels: s += k.text()
    s += '.section .rodata,"a"\n'
    for k in kernels: s += ".p2align 6\n" + k.desc()
    open(path,"w").write(s)
KA = dict(q=0,k=8,v=16,shift=24,ssmk=32,ssmD=40,bx=48,wg=56,wu=64,wd=72,out=80,dbg=88,ws=96)
```

```python
from asmlib import *
WS_XN    = 0
WS_STATS = 4<<20
WS_UR    = 5<<20
WS_H     = 10<<20
WS_ZT    = 26<<20
WS_FLAG  = 31<<20
WS_SIZE  = 268435456
S=2048; D=1024; F=3584

def wave_sum(k, v, t):
    k(f"""s_nop 1
    v_add_f32_dpp v{v}, v{v}, v{v} quad_perm:[1,0,3,2] row_mask:0xf bank_mask:0xf
    s_nop 1
    v_add_f32_dpp v{v}, v{v}, v{v} quad_perm:[2,3,0,1] row_mask:0xf bank_mask:0xf
    s_nop 1
    v_add_f32_dpp v{v}, v{v}, v{v} row_half_mirror row_mask:0xf bank_mask:0xf
    s_nop 1
    v_add_f32_dpp v{v}, v{v}, v{v} row_mirror row_mask:0xf bank_mask:0xf
    v_mov_b32 v{t}, v{v}
    s_nop 1
    v_permlane16_swap_b32 v{v}, v{t}
    v_add_f32 v{v}, v{v}, v{t}
    v_mov_b32 v{t}, v{v}
    s_nop 1
    v_permlane32_swap_b32 v{v}, v{t}
    v_add_f32 v{v}, v{v}, v{t}""")
def bf16r(k, v):
    k(f"""v_cvt_pk_bf16_f32 v{v}, v{v}, v{v}
    v_and_b32 v{v}, 0xffff0000, v{v}""")
```

```python
from common import *
WS_STAMP3 = 66<<20
HC=4160; CH_LDS=4*HC+4608
def conv_body(k, name, sw, lds_base_sgpr, srd_h, srd_ws, srd_D, vb=0):
    pass
def conv_kernel(name="conv_kernel", stamps=False):
    k = K(name, vgpr=128)
    AF=32; BF=64; ACC=96
    def stamp(i):
        if stamps:
            k(f"""s_memtime s[{60+4*i}:{61+4*i}]
            s_memrealtime s[{62+4*i}:{63+4*i}]""")
    k(f"""
    s_cmp_ge_u32 s2, 256
    s_cbranch_scc1 {name}_end""")
    stamp(0)
    k(f"""
    s_load_dwordx4 s[4:7], s[0:1], {KA['ssmk']}
    s_load_dwordx2 s[8:9], s[0:1], {KA['ws']}
    v_lshrrev_b32 v1, 6, v0
    v_and_b32 v2, 63, v0
    s_nop 0
    v_readfirstlane_b32 s3, v1
    v_lshrrev_b32 v3, 4, v2            ; g
    v_and_b32 v4, 15, v2               ; m / n
    s_lshl_b32 s14, s2, 2
    s_add_u32 s14, s14, s3             ; channel
    s_mul_i32 s15, s3, {CH_LDS}
    s_lshl_b32 s16, s14, 12            ; channel*4096
    v_lshlrev_b32 v5, 4, v2
    s_waitcnt lgkmcnt(0)""")
    k.srd(20,4,4194304); k.srd(24,6,2048); k.srd(32,8,WS_SIZE)
    k(f"""v_add_u32 v6, v3, v4
    v_subrev_u32 v6, 15, v6
    v_lshlrev_b32 v6, 1, v6
    v_cmp_gt_i32 vcc, 0, v6
    v_add_u32 v6, s16, v6
    s_nop 0
    v_cndmask_b32 v6, v6, -1, vcc
    buffer_load_ushort v7, v6, s[20:23], 0 offen
    s_lshl_b32 s12, s14, 1
    v_mov_b32 v8, s12
    buffer_load_ushort v8, v8, s[24:27], 0 offen""")
    for i in range(4):
        k(f"""s_add_u32 m0, s15, {4*HC+i*1024}
        s_add_u32 s12, s16, {WS_UR+i*1024}
        buffer_load_dwordx4 v5, s[32:35], s12 offen lds""")
    for i in range(4):
        for c in range(4):
            k(f"""s_add_u32 m0, s15, {c*HC+32+i*1024}
            s_add_u32 s12, s16, {2*(c+1)+i*1024}
            buffer_load_dwordx4 v5, s[20:23], s12 offen lds""")
    k(f"""
    v_mov_b32 v10, 0
    v_mov_b32 v11, 0
    v_lshlrev_b32 v9, 3, v2
    v_add_u32 v9, s15, v9
    ds_write_b64 v9, v[10:11] offset:{4*HC+4096}
    v_and_b32 v9, 3, v4
    v_mul_u32_u24 v9, {HC}, v9
    v_and_b32 v10, 12, v4
    v_lshl_add_u32 v10, v3, 3, v10
    v_lshl_add_u32 v9, v10, 1, v9
    v_add_u32 v12, s15, v9             ; A base
    v_lshlrev_b32 v9, 5, v4
    v_sub_u32 v9, {4*HC+480}, v9
    v_lshl_add_u32 v9, v3, 4, v9
    v_add_u32 v13, s15, v9             ; B base (b=7,r=0); b -> +512*(7-b); r -> +64
    v_mul_u32_u24 v9, {HC}, v3
    v_lshl_add_u32 v9, v4, 1, v9
    v_add_u32 v9, s15, v9
    s_waitcnt vmcnt(21)
    ds_write_b16 v9, v7""")
    for i in range(32): k(f"v_mov_b32 v{ACC+i}, 0")
    k("s_waitcnt vmcnt(0) lgkmcnt(0)")
    stamp(1)
    def rdA(a,r):
        k(f"ds_read_b64 v[{AF+4*a}:{AF+4*a+1}], v12 offset:{512*a+64*r}")
        k(f"ds_read_b64 v[{AF+4*a+2}:{AF+4*a+3}], v12 offset:{512*a+64*r+8}")
    def rdB(b,r):
        k(f"ds_read_b128 v[{BF+4*b}:{BF+4*b+3}], v13 offset:{512*(7-b)+64*r}")
    order=[]
    def R(kind,i,r):
        (rdA if kind=="A" else rdB)(i,r); order.extend([(kind,i,r)]*(2 if kind=="A" else 1))
    def wait(tags):
        last=max(i for i,t in enumerate(order) if t in tags)
        return min(15,len(order)-1-last)
    R("B",0,0); R("A",7,0)
    for i in range(1,8): R("A",7-i,0); R("B",i,0)
    done=set()
    for r in range(8):
        for a in range(7,-1,-1):
            for b in range(0,8-a):
                tags=[t for t in (("A",a,r),("B",b,r)) if t not in done]
                if tags:
                    n=wait(tags); k(f"s_waitcnt lgkmcnt({n})")
                    for t in order[:len(order)-n]: done.add(t)
                j=a+b
                k(f"v_mfma_f32_16x16x32_bf16 v[{ACC+4*j}:{ACC+4*j+3}], v[{AF+4*a}:{AF+4*a+3}], v[{BF+4*b}:{BF+4*b+3}], v[{ACC+4*j}:{ACC+4*j+3}]")
                if a==0 and r<7: R("B",b,r+1)
            if r<7: R("A",a,r+1)
    stamp(2)
    k(f"""v_lshlrev_b32 v9, 5, v4
    v_lshl_add_u32 v9, v3, 3, v9       ; 2*(16n+4g)
    v_sub_u32 v10, {4*HC+2*(2044-256*7)}, v9
    v_add_u32 v10, s15, v10""")
    for j in range(8): k(f"ds_read_b64 v[{AF+2*j}:{AF+2*j+1}], v10 offset:{512*(7-j)}")
    k(f"""v_lshlrev_b32 v8, 16, v8
    v_lshlrev_b32 v9, 5, v4
    v_lshrrev_b32 v10, 1, v3
    v_lshl_add_u32 v9, v10, 4, v9
    v_and_b32 v10, 1, v3
    v_lshl_add_u32 v9, v10, 9, v9
    s_add_u32 s12, s16, {WS_ZT}
    s_waitcnt lgkmcnt(0)""")
    for j in range(8):
        a=ACC+4*j; u=AF+2*j
        k(f"""v_and_b32 v16, 0xffff0000, v{u+1}
        v_lshlrev_b32 v17, 16, v{u+1}
        v_and_b32 v18, 0xffff0000, v{u}
        v_lshlrev_b32 v19, 16, v{u}
        v_fmac_f32 v{a}, v16, v8
        v_fmac_f32 v{a+1}, v17, v8
        v_fmac_f32 v{a+2}, v18, v8
        v_fmac_f32 v{a+3}, v19, v8""")
        o4=BF+4*(j>>1)+2*(j&1)
        k(f"""v_cvt_pk_bf16_f32 v{o4}, v{a}, v{a+1}
        v_cvt_pk_bf16_f32 v{o4+1}, v{a+2}, v{a+3}""")
        if j&1:
            b=BF+4*(j>>1)
            k(f"""s_nop 1
            v_permlane16_swap_b32 v{b}, v{b+2}
            v_permlane16_swap_b32 v{b+1}, v{b+3}
            buffer_store_dwordx4 v[{b}:{b+3}], v9, s[32:35], s12 offen offset:{(j>>1)*1024}""")
    if stamps:
        k("s_waitcnt vmcnt(0)")
        stamp(3)
        k(f"""s_waitcnt lgkmcnt(0)
        s_lshl_b32 s12, s14, 5
        s_add_u32 s12, s12, {WS_STAMP3}""")
        for i in range(4):
            k(f"v_mov_b32 v{20+2*i}, s{60+4*i}\nv_mov_b32 v{21+2*i}, s{62+4*i}")
        k(f"""v_mov_b32 v3, 0
        buffer_store_dwordx4 v[20:23], v3, s[32:35], s12 offen
        buffer_store_dwordx4 v[24:27], v3, s[32:35], s12 offen offset:16""")
    k(f"{name}_end:\ns_endpgm")
    return k, (name, 256, 256, 4*CH_LDS)
```

```python
from common import *
WS_STAMP = 64<<20
def gemm1_kernel(name="gemm1_kernel", stamps=False, xsrc="xn", opts=None):
    o = dict(barpos=2, dmapos=(2,3,4,5), setprio=False, nomfma=False, nodma=False)
    if opts: o.update(opts)
    k = K(name, vgpr=256)
    ACC=128
    WF=64
    XF=(96,112)
    vWa=[8,9,10,11]; vXb=[12,13]; vXc=[14,15]; vDW=16; vDX=17
    def acc(mt,nt): r=ACC+(mt*4+nt)*4; return f"v[{r}:{r+3}]"
    def stamp(i):
        if stamps:
            k(f"""s_memtime s[{60+4*i}:{61+4*i}]
            s_memrealtime s[{62+4*i}:{63+4*i}]""")
    k(f"""
    s_cmp_ge_u32 s2, 224
    s_cbranch_scc1 {name}_end""")
    stamp(0)
    k(f"""
    s_load_dwordx4 s[4:7], s[0:1], {KA['wg']}
    s_load_dwordx2 s[8:9], s[0:1], {KA['ws']}
    s_load_dwordx2 s[10:11], s[0:1], {KA['q']}
    v_lshrrev_b32 v1, 6, v0
    v_and_b32 v2, 63, v0
    s_and_b32 s12, s2, 7               ; xcd
    v_readfirstlane_b32 s3, v1
    s_lshr_b32 s13, s2, 3              ; idx 0..27
    s_and_b32 s14, s12, 1
    s_lshl_b32 s14, s14, 2
    s_and_b32 s15, s13, 3
    s_add_u32 s14, s14, s15            ; tb
    s_lshr_b32 s12, s12, 1
    s_mul_i32 s12, s12, 7
    s_lshr_b32 s13, s13, 2
    s_add_u32 s15, s12, s13            ; fb
    v_lshrrev_b32 v3, 4, v2            ; l>>4
    v_and_b32 v4, 15, v2               ; l&15
    s_lshl_b32 s12, s3, 2              ; 4w
    v_add_u32 v5, s12, v3              ; row = 4w + (l>>4)
    v_mul_u32_u24 v5, {F*2}, v5
    s_lshr_b32 s13, s3, 1
    s_and_b32 s13, s13, 1
    s_lshl_b32 s13, s13, 2
    v_or_b32 v6, s13, v3               ; f(row)
    v_lshlrev_b32 v6, 1, v6
    v_xor_b32 v6, v6, v4
    v_lshl_add_u32 v{vDW}, v6, 4, v5
    v_lshrrev_b32 v5, 3, v2            ; l>>3
    s_lshl_b32 s13, s3, 3
    v_add_u32 v5, s13, v5              ; row = 8w + (l>>3)
    v_lshlrev_b32 v5, 11, v5
    v_add_u32 v6, s12, v3
    v_and_b32 v6, 7, v6                ; s(row)
    v_and_b32 v7, 7, v2
    v_xor_b32 v6, v6, v7
    v_lshl_add_u32 v{vDX}, v6, 4, v5
    s_lshl_b32 s40, s15, 8
    s_lshl_b32 s41, s14, 19
    s_lshl_b32 s42, s3, 10
    s_waitcnt lgkmcnt(0)""")
    k.srd(20,4,D*F*2); k.srd(24,6,D*F*2); k.srd(32,8,WS_SIZE)
    if xsrc=="xn": k.srd(28,8,4194304)
    else: k.srd(28,10,4194304)
    def dmaW(buf, which):
        if o["nodma"]: return
        k(f"""s_add_u32 m0, s42, {buf*16384 + which*8192}
        s_nop 0
        buffer_load_dwordx4 v{vDW}, s[{20+4*which}:{23+4*which}], s40 offen lds""")
    def advW(): k(f"s_add_u32 s40, s40, {32*F*2}")
    def dmaX(t, bufreg=None, bufimm=None):
        if o["nodma"]: return
        if bufreg is not None: k(f"s_add_u32 m0, s{bufreg}, {t*8192}")
        else: k(f"s_add_u32 m0, s42, {65536+bufimm*32768+t*8192}")
        k(f"""s_add_u32 s43, s41, {t*131072}
        buffer_load_dwordx4 v{vDX}, s[28:31], s43 offen lds""")
    def advX(): k("s_add_u32 s41, s41, 128")
    dmaW(0,0); dmaW(0,1); advW()
    for t in range(4): dmaX(t,bufimm=0)
    advX()
    dmaW(1,0); dmaW(1,1); advW()
    dmaW(2,0); dmaW(2,1); advW()
    for t in range(4): dmaX(t,bufimm=1)
    advX()
    dmaW(3,0); dmaW(3,1); advW()
    dmaX(0,bufimm=2); dmaX(1,bufimm=2)
    k(f"""
    v_lshrrev_b32 v5, 2, v2
    v_and_b32 v5, 3, v5                ; r
    v_lshl_add_u32 v6, v3, 3, v5       ; 8g + r
    v_lshlrev_b32 v6, 8, v6
    v_and_b32 v7, 3, v2
    v_lshl_add_u32 v6, v7, 3, v6       ; + 8c
    v_and_b32 v7, 1, v3
    v_lshl_add_u32 v5, v7, 2, v5       ; f = r | (g&1)<<2
    s_lshr_b32 s12, s3, 2              ; a
    s_lshl_b32 s12, s12, 2""")
    for j in range(4):
        k(f"""s_add_u32 s13, s12, {j}
        v_xor_b32 v7, s13, v5
        v_lshl_add_u32 v{vWa[j]}, v7, 5, v6""")
    k(f"""
    s_and_b32 s12, s3, 3
    s_lshl_b32 s12, s12, 13            ; tq*64*128
    s_add_u32 s12, s12, 65536
    v_lshlrev_b32 v5, 7, v4
    v_add_u32 v5, s12, v5
    v_lshrrev_b32 v6, 1, v4            ; s
    v_xor_b32 v6, v6, v3
    v_lshl_add_u32 v{vXb[0]}, v6, 4, v5
    v_xor_b32 v{vXb[1]}, 64, v{vXb[0]}
    v_mov_b32 v{vXc[0]}, v{vXb[0]}
    v_mov_b32 v{vXc[1]}, v{vXb[1]}
    s_mov_b32 s44, 0
    s_add_u32 s45, s42, {65536+2*32768}
    """)
    for i in range(128): k(f"v_mov_b32 v{ACC+i}, 0")
    def rdW(buf, mt):
        if o.get("noread") and started[0]: return
        j=mt&3; off=buf*16384+(mt>>2)*8192
        k(f"ds_read_b64_tr_b16 v[{WF+4*mt}:{WF+4*mt+1}], v{vWa[j]} offset:{off}")
        k(f"ds_read_b64_tr_b16 v[{WF+4*mt+2}:{WF+4*mt+3}], v{vWa[j]} offset:{off+1024}")
    def rdX(h, nt):
        if o.get("noread") and started[0]: return
        r=XF[h]+4*nt
        k(f"ds_read_b128 v[{r}:{r+3}], v{vXc[h]} offset:{nt*2048}")
    started=[False]
    k("s_waitcnt vmcnt(12)\ns_barrier")
    stamp(1)
    for nt in range(4): rdX(0,nt)
    for mt in range(8): rdW(0,mt)
    if o.get("noread"):
        for nt in range(4): rdX(1,nt)
    started[0]=True
    if o.get("nodma_loop"): o["nodma"]=True
    if o["setprio"]:
        k(f"""s_cmp_ge_u32 s3, 4
        s_cbranch_scc0 {name}_np
        s_setprio 1
        {name}_np:""")
    def mfma(mt,nt,h):
        if o["nomfma"]: return
        k(f"v_mfma_f32_16x16x32_bf16 {acc(mt,nt)}, v[{WF+4*mt}:{WF+4*mt+3}], v[{XF[h]+4*nt}:{XF[h]+4*nt+3}], {acc(mt,nt)}")
    def half(i, last_reads=True, doW=True, doX=True, vm=8, bar=True):
        h=i&1; nb=(i+1)&3; bp=o["barpos"]
        k(f"s_waitcnt lgkmcnt({min(15,2*(8-bp))})")
        for mt in range(bp):
            for nt in range(4): mfma(mt,nt,h)
        if bar:
            k(f"s_waitcnt vmcnt({vm}) lgkmcnt(0)\ns_barrier")
        else:
            k("s_waitcnt lgkmcnt(0)")
        pend=[]
        if last_reads:
            if h==1:
                pend.append(lambda: k(f"""s_add_u32 s45, s44, s42
                s_add_u32 s45, s45, 65536
                s_add_u32 s44, s44, 32768
                s_cmp_eq_u32 s44, 98304
                s_cselect_b32 s44, 0, s44
                v_add_u32 v{vXc[0]}, s44, v{vXb[0]}
                v_add_u32 v{vXc[1]}, s44, v{vXb[1]}"""))
            for nt in range(4): pend.append(lambda nt=nt: rdX(h^1,nt))
            for mt in range(bp): pend.append(lambda mt=mt: rdW(nb,mt))
        dm=[]
        if doW: dm += [lambda: dmaW(i&3,0), lambda: (dmaW(i&3,1), advW())]
        if doX:
            if h==1: dm += [lambda: dmaX(0,bufreg=45), lambda: dmaX(1,bufreg=45)]
            else: dm += [lambda: dmaX(2,bufreg=45), lambda: (dmaX(3,bufreg=45), advX())]
        dpos=list(o["dmapos"])
        for mt in range(bp,8):
            for nt in range(4):
                mfma(mt,nt,h)
                if pend: pend.pop(0)()
                if nt==1 and dm and dpos and mt>=dpos[0] and not pend:
                    dm.pop(0)(); dpos.pop(0)
            if last_reads:
                while pend and mt==7: pend.pop(0)()
                if pend: pend.append(lambda mt=mt: rdW(nb,mt))
                else: rdW(nb,mt)
        while pend: pend.pop(0)()
        while dm: dm.pop(0)()
    k(f"s_mov_b32 s46, 6\n{name}_loop:")
    for i in range(4): half(i)
    k(f"""s_sub_u32 s46, s46, 1
    s_cmp_lg_u32 s46, 0
    s_cbranch_scc1 {name}_loop""")
    half(24); half(25); half(26); half(27,doX=False)
    half(28,doW=False,doX=False,vm=6); half(29,doW=False,doX=False,vm=2); half(30,doW=False,doX=False,vm=0)
    half(31,last_reads=False,doW=False,doX=False,bar=False)
    stamp(2)
    k(f"""
    s_mov_b32 s50, 0xc0135761          ; c0 = -2.302208
    s_mov_b32 s51, 0xc0135761
    s_mov_b32 s52, 0xbdd2d3e8          ; c1 = c0*0.044715
    s_mov_b32 s53, 0xbdd2d3e8
    s_lshr_b32 s12, s3, 2
    s_lshl_b32 s13, s15, 2
    s_lshl_b32 s12, s12, 1
    s_add_u32 s13, s13, s12
    s_lshl_b32 s13, s13, 7
    s_lshl_b32 s12, s14, 4
    s_add_u32 s13, s13, s12
    s_and_b32 s12, s3, 3
    s_lshl_b32 s12, s12, 2
    s_add_u32 s13, s13, s12
    s_lshl_b32 s13, s13, 10
    s_add_u32 s54, s13, {WS_H}
    s_add_u32 s55, s54, {128*1024}
    v_lshlrev_b32 v3, 4, v2
    s_nop 7""")
    T=20
    for p in range(2):
        for nt in range(4):
            o4 = 64+ 4*((p*4+nt)&3)
            for q in range(2):
                g=ACC+((2*p+q)*4+nt)*4; u=ACC+((4+2*p+q)*4+nt)*4
                t=T+8*q
                k(f"""v_pk_mul_f32 v[{t}:{t+1}], v[{g}:{g+1}], v[{g}:{g+1}]
                v_pk_mul_f32 v[{t+2}:{t+3}], v[{g+2}:{g+3}], v[{g+2}:{g+3}]
                v_pk_fma_f32 v[{t}:{t+1}], v[{t}:{t+1}], s[52:53], v[40:41]
                v_pk_fma_f32 v[{t+2}:{t+3}], v[{t+2}:{t+3}], s[52:53], v[40:41]
                v_pk_mul_f32 v[{t}:{t+1}], v[{t}:{t+1}], v[{g}:{g+1}]
                v_pk_mul_f32 v[{t+2}:{t+3}], v[{t+2}:{t+3}], v[{g+2}:{g+3}]
                v_pk_mul_f32 v[{u}:{u+1}], v[{u}:{u+1}], v[{g}:{g+1}]
                v_exp_f32 v{t}, v{t}
                v_exp_f32 v{t+1}, v{t+1}
                v_exp_f32 v{t+2}, v{t+2}
                v_exp_f32 v{t+3}, v{t+3}
                v_pk_mul_f32 v[{u+2}:{u+3}], v[{u+2}:{u+3}], v[{g+2}:{g+3}]
                v_pk_add_f32 v[{t}:{t+1}], v[{t}:{t+1}], 1.0 op_sel_hi:[1,0]
                v_pk_add_f32 v[{t+2}:{t+3}], v[{t+2}:{t+3}], 1.0 op_sel_hi:[1,0]
                v_rcp_f32 v{t}, v{t}
                v_rcp_f32 v{t+1}, v{t+1}
                v_rcp_f32 v{t+2}, v{t+2}
                v_rcp_f32 v{t+3}, v{t+3}
                s_nop 0
                v_pk_mul_f32 v[{t}:{t+1}], v[{t}:{t+1}], v[{u}:{u+1}]
                v_pk_mul_f32 v[{t+2}:{t+3}], v[{t+2}:{t+3}], v[{u+2}:{u+3}]
                v_cvt_pk_bf16_f32 v{o4+2*q}, v{t}, v{t+1}
                v_cvt_pk_bf16_f32 v{o4+2*q+1}, v{t+2}, v{t+3}""")
            k(f"buffer_store_dwordx4 v[{o4}:{o4+3}], v3, s[32:35], s{54+p} offen offset:{nt*1024}")
    idx = next(i for i,l in enumerate(k.lines) if "v_pk_mul_f32 v[20:21]" in l)
    k.lines[idx:idx] = ["    v_mov_b32 v40, s50","    v_mov_b32 v41, s50"]
    if stamps:
        k("s_waitcnt vmcnt(0)")
        stamp(3)
        k(f"""s_waitcnt lgkmcnt(0)
        s_lshl_b32 s12, s2, 3
        s_add_u32 s12, s12, s3
        s_lshl_b32 s12, s12, 5
        s_add_u32 s12, s12, {WS_STAMP}""")
        for i in range(4):
            k(f"v_mov_b32 v{20+2*i}, s{60+4*i}\nv_mov_b32 v{21+2*i}, s{62+4*i}")
        k(f"""v_mov_b32 v3, 0
        buffer_store_dwordx4 v[20:23], v3, s[32:35], s12 offen
        buffer_store_dwordx4 v[24:27], v3, s[32:35], s12 offen offset:16""")
    k(f"{name}_end:\ns_endpgm")
    return k, (name, 224, 512, 163840)
if __name__=="__main__":
    from k_prep import prep_kernel
    kp,lp = prep_kernel()
    k,l = gemm1_kernel(stamps=True)
    emit("t_g1.s",[lp,l],[kp,k])
    for nm,op in dict(nodma=dict(nodma_loop=True), noread=dict(noread=True), none=dict(noread=True,nodma_loop=True), prio=dict(setprio=True), bp1=dict(barpos=1,dmapos=(1,2,3,4)), bp4=dict(barpos=4,dmapos=(4,5,6,7))).items():
        k,l = gemm1_kernel(stamps=True, opts=op)
        emit(f"t_g1_{nm}.s",[lp,l],[kp,k])
```

```python
from common import *
WS_STAMP2 = 65<<20
def gemm2_kernel(name="gemm2_kernel", stamps=False, opts=None):
    o = dict(NB=4, HD=2, nomfma=False)
    if opts: o.update(opts)
    NB=o["NB"]; HD=o["HD"]
    k = K(name, vgpr=128)
    ACC=96
    WF=(64,80)
    HF=32
    if HD>2:
        k.vgpr=160; HF=128 if HD<=2 else 0
    hreg=lambda slot,kap,nt: (32+slot*16+kap*8+nt*4) if slot<2 else (128+(slot-2)*16+kap*8+nt*4)
    vWa=[8,9,10,11]; vDW=12; vH=13
    ZOFF=NB*16384
    def acc(mt,nt): r=ACC+(mt*2+nt)*4; return f"v[{r}:{r+3}]"
    def stamp(i):
        if stamps:
            k(f"""s_memtime s[{60+4*i}:{61+4*i}]
            s_memrealtime s[{62+4*i}:{63+4*i}]""")
    k(f"""
    s_cmp_ge_u32 s2, 256
    s_cbranch_scc1 {name}_end""")
    stamp(0)
    k(f"""
    s_load_dwordx4 s[4:7], s[0:1], {KA['wd']}
    s_load_dwordx2 s[8:9], s[0:1], {KA['ws']}
    s_load_dwordx2 s[10:11], s[0:1], {KA['q']}
    v_lshrrev_b32 v1, 6, v0
    v_and_b32 v2, 63, v0
    s_and_b32 s12, s2, 7
    v_readfirstlane_b32 s3, v1
    s_lshr_b32 s13, s2, 3              ; idx 0..31
    s_and_b32 s14, s12, 3
    s_lshl_b32 s14, s14, 2
    s_and_b32 s15, s13, 3
    s_add_u32 s14, s14, s15
    s_lshr_b32 s12, s12, 2
    s_lshl_b32 s12, s12, 3
    s_lshr_b32 s13, s13, 2
    s_add_u32 s15, s12, s13
    v_lshrrev_b32 v3, 4, v2            ; g
    v_and_b32 v4, 15, v2
    v_lshrrev_b32 v5, 3, v2
    s_lshl_b32 s13, s3, 3
    v_add_u32 v5, s13, v5
    v_lshlrev_b32 v5, 11, v5
    v_lshlrev_b32 v6, 1, v3
    v_and_b32 v7, 7, v2
    v_xor_b32 v6, v6, v7
    v_lshl_add_u32 v{vDW}, v6, 4, v5
    s_lshl_b32 s40, s15, 7
    s_lshl_b32 s42, s3, 10
    s_lshr_b32 s16, s3, 2              ; kg
    s_and_b32 s17, s3, 3               ; tq
    s_lshl_b32 s12, s16, 7
    s_lshl_b32 s13, s14, 3
    s_add_u32 s12, s12, s13
    s_lshl_b32 s13, s17, 1
    s_add_u32 s12, s12, s13
    s_lshl_b32 s12, s12, 10
    s_add_u32 s41, s12, {WS_H}
    v_lshlrev_b32 v{vH}, 4, v2
    s_waitcnt lgkmcnt(0)""")
    k.srd(20,4,D*F*2); k.srd(24,6,4194304); k.srd(28,10,4194304); k.srd(32,8,WS_SIZE)
    def dmaW(buf, part):
        k(f"""s_add_u32 m0, s42, {buf*16384+part*8192}""")
        if part==0: k(f"s_nop 0\nbuffer_load_dwordx4 v{vDW}, s[20:23], s40 offen lds")
        else: k(f"""s_add_u32 s43, s40, {64*2048}
        buffer_load_dwordx4 v{vDW}, s[20:23], s43 offen lds
        s_add_u32 s40, s40, {128*2048}""")
    def ldH(slot,kap):
        if kap==0: so="s41"
        else:
            k(f"s_add_u32 s44, s41, {2*131072}"); so="s44"
        for nt in range(2):
            r=hreg(slot,kap,nt)
            k(f"buffer_load_dwordx4 v[{r}:{r+3}], v{vH}, s[32:35], {so} offen offset:{nt*1024}")
        if kap==1: k(f"s_add_u32 s41, s41, {4*131072}")
    for s in range(max(NB-1,HD)):
        if s<NB-1: dmaW(s,0); dmaW(s,1)
        if s<HD: ldH(s,0); ldH(s,1)
    ZL = o.get("z", True)
    k(f"""
    v_lshrrev_b32 v5, 2, v2
    v_and_b32 v5, 3, v5                ; r
    v_lshl_add_u32 v6, v3, 2, v5       ; row = 4g + r
    v_lshrrev_b32 v7, 1, v6
    v_and_b32 v7, 3, v7                ; s(row)
    v_lshlrev_b32 v6, 7, v6
    v_and_b32 v14, 3, v2
    v_lshl_add_u32 v6, v14, 3, v6
    s_lshl_b32 s12, s16, 12
    v_add_u32 v6, s12, v6""")
    for mt in range(4):
        k(f"""v_xor_b32 v14, {mt}, v7
        v_lshl_add_u32 v{vWa[mt]}, v14, 5, v6""")
    for i in range(32): k(f"v_mov_b32 v{ACC+i}, 0")
    def rdW(buf,j,mt):
        off=buf*16384+j*8192
        r=WF[j]+4*mt
        k(f"ds_read_b64_tr_b16 v[{r}:{r+1}], v{vWa[mt]} offset:{off}")
        k(f"ds_read_b64_tr_b16 v[{r+2}:{r+3}], v{vWa[mt]} offset:{off+2048}")
    def mfma(slot,j,mt,nt):
        if o["nomfma"]: return
        r=hreg(slot,j,nt)
        k(f"v_mfma_f32_16x16x32_bf16 {acc(mt,nt)}, v[{WF[j]+4*mt}:{WF[j]+4*mt+3}], v[{r}:{r+3}], {acc(mt,nt)}")
    NS=28
    order=[]
    for s in range(max(NB-1,HD)):
        if s<NB-1: order += [("W",s)]*2
        if s<HD: order += [("H",s,0)]*2+[("H",s,1)]*2
    def need(tags):
        last=max(i for i,t in enumerate(order) if t in tags)
        return len(order)-1-last
    def stage(s, emit=True):
        buf=s%NB; slot=s%HD
        out=[]
        n=need([("W",s)])
        k(f"; ---- stage {s}\ns_waitcnt vmcnt({n})\ns_barrier")
        if s==0: stamp(1)
        for mt in range(4): rdW(buf,0,mt)
        for mt in range(4): rdW(buf,1,mt)
        if s+NB-1<NS:
            dmaW((s+NB-1)%NB,0); dmaW((s+NB-1)%NB,1); order.extend([("W",s+NB-1)]*2)
        for j in range(2):
            n=need([("H",s,j)])
            k(f"s_waitcnt vmcnt({n}) lgkmcnt({8 if j==0 else 0})")
            for mt in range(4):
                for nt in range(2): mfma(slot,j,mt,nt)
            if s+HD<NS:
                ldH(slot,j); order.extend([("H",s+HD,j)]*2)
    import math
    P = NB*HD//math.gcd(NB,HD)
    nloop = (NS-max(NB-1,HD))//P
    s=0
    for i in range(P): stage(s); s+=1
    nl = nloop-1
    if nl>0:
        k(f"s_mov_b32 s46, {nl}\n{name}_loop:")
        mark=len(k.lines)
        for i in range(P): stage(s); s+=1
        body=k.lines[mark:]
        k(f"""s_sub_u32 s46, s46, 1
        s_cmp_lg_u32 s46, 0
        s_cbranch_scc1 {name}_loop""")
        for it in range(nl-1):
            mark2=len(k.lines)
            for i in range(P): stage(s); s+=1
            b2=k.lines[mark2:]; del k.lines[mark2:]
            f=lambda L:[x for x in L if "; ----" not in x]
            assert f(b2)==f(body), "loop body not steady"
    while s<NS: stage(s); s+=1
    stamp(2)
    k(f"""
    s_barrier
    v_lshlrev_b32 v5, 1, v3
    v_xor_b32 v5, v5, v4
    v_lshlrev_b32 v5, 4, v5
    v_lshl_add_u32 v5, v3, 12, v5
    v_xor_b32 v6, 0x80, v5
    s_lshl_b32 s12, s15, 6
    s_lshl_b32 s13, s3, 3
    s_add_u32 s12, s12, s13
    s_lshl_b32 s12, s12, 12
    s_lshl_b32 s13, s14, 8
    s_add_u32 s12, s12, s13
    s_add_u32 s12, s12, {WS_ZT}
    s_add_u32 s13, s12, {4*4096}
    s_lshl_b32 s43, s3, 11
    s_add_u32 m0, s43, {ZOFF}
    s_nop 0
    buffer_load_dwordx4 v5, s[32:35], s12 offen lds
    s_add_u32 m0, s43, {ZOFF+1024}
    s_nop 0
    buffer_load_dwordx4 v6, s[32:35], s13 offen lds
    s_lshl_b32 s12, s14, 7
    s_lshl_b32 s13, s17, 5
    s_add_u32 s12, s12, s13
    s_lshl_b32 s13, s16, 4
    s_add_u32 s12, s12, s13
    v_add_u32 v5, s12, v4              ; token
    v_lshlrev_b32 v6, 3, v5
    s_mov_b32 s13, {WS_STATS}
    buffer_load_dwordx2 v[16:17], v6, s[32:35], s13 offen
    v_lshlrev_b32 v5, 11, v5
    v_lshl_add_u32 v15, v3, 3, v5      ; token*2048 + g*8
    s_lshl_b32 s47, s15, 7""")
    for mt in range(4):
        k(f"buffer_load_dwordx2 v[{20+2*mt}:{21+2*mt}], v15, s[28:31], s47 offen offset:{mt*32}")
    k(f"""v_lshlrev_b32 v5, 4, v2
    s_lshl_b32 s12, s3, 12
    v_add_u32 v6, s12, v5
    s_xor_b32 s12, s12, {4<<12}
    v_add_u32 v7, s12, v5
    s_cmp_eq_u32 s16, 0
    s_cbranch_scc1 {name}_e0""")
    for mt in range(4): k(f"ds_write_b128 v6, {acc(mt,0)} offset:{mt*1024}")
    for mt in range(4):
        for i in range(4): k(f"v_mov_b32 v{ACC+(mt*2)*4+i}, v{ACC+(mt*2+1)*4+i}")
    k(f"s_branch {name}_e1\n{name}_e0:")
    for mt in range(4): k(f"ds_write_b128 v6, {acc(mt,1)} offset:{mt*1024}")
    k(f"""{name}_e1:
    s_waitcnt vmcnt(5) lgkmcnt(0)
    s_barrier""")
    for mt in range(4): k(f"ds_read_b128 v[{32+4*mt}:{35+4*mt}], v7 offset:{mt*1024}")
    k(f"""v_lshrrev_b32 v5, 2, v2
    v_and_b32 v5, 3, v5
    v_lshl_add_u32 v5, v3, 2, v5       ; row = 4g+r
    v_and_b32 v6, 7, v5
    s_lshl_b32 s12, s17, 1
    s_add_u32 s12, s12, s16
    v_xor_b32 v6, s12, v6
    v_lshlrev_b32 v6, 5, v6
    v_lshl_add_u32 v6, v5, 8, v6
    v_and_b32 v5, 3, v2
    v_lshl_add_u32 v6, v5, 3, v6
    v_add_u32 v6, {ZOFF}, v6""")
    for mt in range(4): k(f"ds_read_b64_tr_b16 v[{48+2*mt}:{49+2*mt}], v6 offset:{mt*4096}")
    k("s_mov_b32 s50, 0xbfb8aa3b\ns_waitcnt vmcnt(0) lgkmcnt(0)")
    for mt in range(4):
        a=ACC+(mt*2)*4
        for i in range(4): k(f"v_add_f32 v{a+i}, v{a+i}, v{32+4*mt+i}")
        xr=20+2*mt; zr=48+2*mt
        k(f"""v_lshlrev_b32 v56, 16, v{xr}
        v_and_b32 v57, 0xffff0000, v{xr}
        v_lshlrev_b32 v58, 16, v{xr+1}
        v_and_b32 v59, 0xffff0000, v{xr+1}
        v_lshlrev_b32 v60, 16, v{zr}
        v_and_b32 v61, 0xffff0000, v{zr}
        v_lshlrev_b32 v62, 16, v{zr+1}
        v_and_b32 v63, 0xffff0000, v{zr+1}""")
        for i in range(4): k(f"v_mul_f32 v{64+i}, s50, v{a+i}")
        for i in range(4): k(f"v_exp_f32 v{64+i}, v{64+i}")
        for i in range(4): k(f"v_sub_f32 v{68+i}, v{56+i}, v16")
        for i in range(4): k(f"v_add_f32 v{64+i}, 1.0, v{64+i}")
        for i in range(4): k(f"v_rcp_f32 v{64+i}, v{64+i}")
        for i in range(4): k(f"v_mul_f32 v{68+i}, v{68+i}, v17")
        for i in range(4): k(f"v_mul_f32 v{68+i}, v{68+i}, v{60+i}")
        for i in range(4): k(f"v_mul_f32 v{64+i}, v{64+i}, v{a+i}")
        for i in range(4): k(f"v_fmac_f32 v{56+i}, v{64+i}, v{68+i}")
        k(f"""v_cvt_pk_bf16_f32 v{72+2*mt}, v56, v57
        v_cvt_pk_bf16_f32 v{73+2*mt}, v58, v59
        buffer_store_dwordx2 v[{72+2*mt}:{73+2*mt}], v15, s[24:27], s47 offen offset:{mt*32}""")
    if stamps:
        k("s_waitcnt vmcnt(0)")
        stamp(3)
        k(f"""s_waitcnt lgkmcnt(0)
        s_lshl_b32 s12, s2, 3
        s_add_u32 s12, s12, s3
        s_lshl_b32 s12, s12, 5
        s_add_u32 s12, s12, {WS_STAMP2}""")
        for i in range(4):
            k(f"v_mov_b32 v{20+2*i}, s{60+4*i}\nv_mov_b32 v{21+2*i}, s{62+4*i}")
        k(f"""v_mov_b32 v3, 0
        buffer_store_dwordx4 v[20:23], v3, s[32:35], s12 offen
        buffer_store_dwordx4 v[24:27], v3, s[32:35], s12 offen offset:16""")
    k(f"{name}_end:\ns_endpgm")
    return k, (name, 256, 512, max(ZOFF+16384, 0))
```

```python
from common import *
def prep_kernel(name="prep_kernel", write_xn=True):
    k = K(name, vgpr=128)
    k(f"""
    s_cmp_ge_u32 s2, 256
    s_cbranch_scc1 {name}_end
    s_load_dwordx4 s[4:7], s[0:1], {KA['q']}
    s_load_dwordx4 s[8:11], s[0:1], {KA['v']}
    s_load_dwordx2 s[12:13], s[0:1], {KA['ws']}
    v_lshrrev_b32 v1, 6, v0
    v_and_b32 v2, 63, v0
    s_nop 0
    v_readfirstlane_b32 s3, v1
    s_waitcnt lgkmcnt(0)""")
    k.srd(16,4,4194304)
    k.srd(20,6,4194304)
    k.srd(24,8,4194304)
    k.srd(28,10,8192)
    k.srd(32,12,WS_SIZE)
    k(f"""
    s_lshl_b32 s36, s2, 3
    s_add_u32 s36, s36, s3
    s_lshl_b32 s37, s36, 11
    v_lshlrev_b32 v3, 4, v2
    buffer_load_dwordx4 v[8:11], v3, s[16:19], s37 offen
    buffer_load_dwordx4 v[12:15], v3, s[16:19], s37 offen offset:1024
    """)
    k(f"""
    s_lshr_b32 s38, s2, 4
    s_and_b32 s39, s2, 15
    v_lshrrev_b32 v4, 5, v0
    v_and_b32 v5, 31, v0
    s_lshl_b32 s40, s38, 7
    v_lshl_add_u32 v6, v4, 3, s40
    v_lshlrev_b32 v6, 11, v6
    s_lshl_b32 s41, s39, 7
    v_lshl_add_u32 v7, v5, 2, s41
    v_add_u32 v6, v6, v7
    v_subrev_u32 v16, {3*2048}, v6
    """)
    for i in range(11):
        if i<3:
            k(f"v_add_u32 v17, {i*2048}, v16" if i else "v_mov_b32 v17, v16")
            k(f"buffer_load_dword v{20+i}, v17, s[20:23], 0 offen")
        else:
            k(f"s_mov_b32 s42, {(i-3)*2048}")
            k(f"buffer_load_dword v{20+i}, v6, s[20:23], s42 offen")
    for i in range(8):
        k(f"s_mov_b32 s42, {i*2048}")
        k(f"buffer_load_dword v{32+i}, v6, s[24:27], s42 offen")
    k(f"""v_lshlrev_b32 v17, 2, v7
    buffer_load_dwordx4 v[40:43], v17, s[28:31], 0 offen""")
    k("s_waitcnt vmcnt(20)")
    for i in range(8):
        k(f"""v_lshlrev_b32 v{48+2*i}, 16, v{8+i}
        v_and_b32 v{49+2*i}, 0xffff0000, v{8+i}""")
    k("v_add_f32 v64, v48, v49")
    for i in range(2,16): k(f"v_add_f32 v64, v64, v{48+i}")
    wave_sum(k,64,65)
    k("v_mul_f32 v64, 0x3a800000, v64")
    k("v_sub_f32 v66, v48, v64\nv_mul_f32 v67, v66, v66")
    for i in range(1,16):
        k(f"v_sub_f32 v66, v{48+i}, v64\nv_fmac_f32 v67, v66, v66")
    wave_sum(k,67,65)
    k("v_mul_f32 v67, 0x3a800000, v67")
    bf16r(k,64); bf16r(k,67)
    k("v_add_f32 v67, 0x3727c5ac, v67")
    bf16r(k,67)
    k("v_sqrt_f32 v67, v67\ns_nop 0")
    bf16r(k,67)
    k("v_rcp_f32 v65, v67\ns_nop 0")
    k("v_fma_f32 v66, -v67, v65, 1.0\nv_fmac_f32 v65, v66, v65")
    if write_xn:
        for i in range(8):
            a,b=48+2*i,49+2*i
            k(f"""v_sub_f32 v{a}, v{a}, v64
            v_sub_f32 v{b}, v{b}, v64
            v_cvt_pk_bf16_f32 v66, v{a}, v{b}
            v_lshlrev_b32 v{a}, 16, v66
            v_and_b32 v{b}, 0xffff0000, v66
            v_mul_f32 v{a}, v{a}, v65
            v_mul_f32 v{b}, v{b}, v65
            v_cvt_pk_bf16_f32 v{8+i}, v{a}, v{b}""")
        k(f"""s_add_u32 s42, s37, {WS_XN}
        buffer_store_dwordx4 v[8:11], v3, s[32:35], s42 offen
        buffer_store_dwordx4 v[12:15], v3, s[32:35], s42 offen offset:1024""")
    k(f"""s_lshl_b32 s42, s36, 3
    s_add_u32 s42, s42, {WS_STATS}
    v_mov_b32 v66, 0
    v_cmp_eq_u32 vcc, 0, v2
    s_and_saveexec_b64 s[44:45], vcc
    buffer_store_dwordx2 v[64:65], v66, s[32:35], s42 offen
    s_mov_b64 exec, s[44:45]""")
    k("s_waitcnt vmcnt(%d)" % (3 if write_xn else 1))
    for c in range(2):
        for p in range(2):
            k(f"""v_lshlrev_b32 v{48+4*c+2*p}, 16, v{40+2*c+p}
            v_and_b32 v{49+4*c+2*p}, 0xffff0000, v{40+2*c+p}""")
    for i in range(11):
        k(f"""v_lshlrev_b32 v{56+i}, 16, v{20+i}
        v_and_b32 v{68+i}, 0xffff0000, v{20+i}""")
    for t in range(8):
        for c,(kb,dst) in enumerate(((56,80),(68,88))):
            sb=48+4*c
            k(f"v_mul_f32 v{dst+t}, v{kb+t}, v{sb+3}")
            for j in (2,1,0):
                k(f"v_fmac_f32 v{dst+t}, v{kb+t+3-j}, v{sb+j}")
        k(f"""v_cvt_pk_bf16_f32 v96, v{80+t}, v{88+t}
        v_lshlrev_b32 v{80+t}, 16, v96
        v_and_b32 v{88+t}, 0xffff0000, v96
        v_lshlrev_b32 v96, 16, v{32+t}
        v_and_b32 v97, 0xffff0000, v{32+t}
        v_mul_f32 v{80+t}, v{80+t}, v96
        v_mul_f32 v{88+t}, v{88+t}, v97""")
    for c,src in enumerate((80,88)):
        for d in range(4):
            k(f"v_cvt_pk_bf16_f32 v{100+4*c+d}, v{src+7-2*d}, v{src+6-2*d}")
    k(f"""v_mul_u32_u24 v16, {2*272}, v5
    v_sub_u32 v17, 15, v4
    v_lshl_add_u32 v16, v17, 4, v16
    ds_write_b128 v16, v[100:103]
    ds_write_b128 v16, v[104:107] offset:272
    s_waitcnt lgkmcnt(0)
    s_barrier
    v_lshrrev_b32 v16, 4, v0
    v_and_b32 v17, 15, v0
    v_mul_u32_u24 v18, 272, v16
    v_lshl_add_u32 v18, v17, 4, v18
    ds_read_b128 v[100:103], v18
    ds_read_b128 v[104:107], v18 offset:{32*272}
    v_lshlrev_b32 v16, 12, v16
    v_lshl_add_u32 v16, v17, 4, v16
    s_lshl_b32 s42, s39, 18
    s_lshl_b32 s43, s38, 8
    s_sub_u32 s42, s42, s43
    s_add_u32 s42, s42, {WS_UR + 4096 - 256}
    s_add_u32 s43, s42, {32*4096}
    s_waitcnt lgkmcnt(1)
    buffer_store_dwordx4 v[100:103], v16, s[32:35], s42 offen
    s_waitcnt lgkmcnt(0)
    buffer_store_dwordx4 v[104:107], v16, s[32:35], s43 offen
    {name}_end:
    s_endpgm""")
    return k, (name, 256, 512, 64*272)
if __name__=="__main__":
    k,l = prep_kernel()
    emit("t_prep.s",[l],[k])
```

```python
import sys
from k_prep import prep_kernel
from k_gemm1 import gemm1_kernel
from k_conv import conv_kernel
from k_gemm2 import gemm2_kernel
from asmlib import emit
def build(path, stamps=False, g1=None, g2=None):
    ks=[prep_kernel(), conv_kernel(stamps=stamps), gemm1_kernel(stamps=stamps,opts=g1), gemm2_kernel(stamps=stamps,opts=g2)]
    emit(path,[l for _,l in ks],[k for k,_ in ks])
if __name__=="__main__":
    build("v1_st.s", True)
    build("v1.s", False)
```

```python
from common import *
WS_STAMP = 64<<20
WS_REC   = WS_STATS + 65536
WS_CS    = WS_STATS + 131072
WS_PART  = WS_STATS + 262144
WS_XFLAG = WS_FLAG + (1<<20)
WS_LFLAG = WS_FLAG + 65536
WS_XCH = 40<<20
HC=4160; CH_LDS=4*HC+4608
C0=0xc0135761; C1=0xbdd2d3e8
sWG,sWU,sQ,sWS,sDBG,sK,sV,sSH,sWD,sHK,sHD = 20,24,28,32,36,40,44,48,52,56,60
SRDS=[(sWG,'wg',D*F*2),(sWU,'wu',D*F*2),(sQ,'q',4194304),(sWS,'ws',WS_SIZE),(sDBG,'dbg',256),(sK,'k',4194304),(sV,'v',4194304),(sSH,'shift',8192),(sWD,'wd',D*F*2),(sHK,'ssmk',4194304),(sHD,'ssmD',2048)]
def R4(s): return f"s[{s}:{s+3}]"
def fin_srd(k, lst):
    for s,_,n in SRDS:
        if s in lst: k(f"s_and_b32 s{s+1}, s{s+1}, 0xffff\ns_mov_b32 s{s+2}, {hex(n)}\ns_mov_b32 s{s+3}, 0x20000")

def k1_kernel(name="ffn1_kernel", stamps=False, opts=None):
    o = dict(bp=1, snake=True, hsc="sc1", pfd=True, rot=True, conv=True, pf3=False, wa="nt", ha="nt", NC=22)
    if opts: o.update(opts)
    bp=o["bp"]
    k = K(name, vgpr=256)
    L=lambda s: f"{name}_{s}"
    def stamp(i, tail=None):
        if o.get("tailst"):
            if tail is None and i not in (0,4): return
            if tail is not None: i=tail
        elif tail is not None and i is None: return
        if stamps:
            k(f"""s_memtime s[{76+4*i}:{77+4*i}]
            s_memrealtime s[{78+4*i}:{79+4*i}]""")
    k(f"""
    s_cmp_ge_u32 s2, 256
    s_cbranch_scc1 {L('end')}""")
    stamp(0)
    for s,key,_ in SRDS: k(f"s_load_dwordx2 s[{s}:{s+1}], s[0:1], {KA[key]}")
    k(f"""
    v_lshrrev_b32 v1, 6, v0
    v_and_b32 v2, 63, v0
    v_lshrrev_b32 v3, 4, v2            ; g = l>>4
    v_readfirstlane_b32 s3, v1
    v_and_b32 v4, 15, v2               ; l&15
    s_cmp_lt_u32 s2, 32
    s_cbranch_scc1 {L('helper')}""")
    ACC=128; XF=96; WF=(64,80)
    vWa=[5,6]; vX=[[7,8],[9,10]]; vDW=11; vDX=12; vT=13; vDUM=14
    REC=16; CS=48
    def acc(nt,mt): r=ACC+(nt*4+mt)*4; return f"v[{r}:{r+3}]"
    k(f"""
    s_sub_u32 s16, s2, 32
    s_and_b32 s17, s16, 7              ; xcd
    s_lshr_b32 s18, s16, 3             ; idx 0..27
    s_and_b32 s14, s17, 1
    s_lshl_b32 s14, s14, 2
    s_and_b32 s15, s18, 3
    s_add_u32 s14, s14, s15            ; tb
    s_lshr_b32 s17, s17, 1
    s_mul_i32 s17, s17, 7
    s_lshr_b32 s18, s18, 2
    s_add_u32 s15, s17, s18            ; fb
    s_lshl_b32 s17, s3, 2              ; 4w
    v_add_u32 v16, s17, v3             ; row = 4w + g
    v_mul_u32_u24 v16, {F*2}, v16
    s_lshr_b32 s18, s3, 1
    s_and_b32 s18, s18, 1
    s_lshl_b32 s18, s18, 2
    v_or_b32 v17, s18, v3
    v_lshlrev_b32 v17, 1, v17
    v_xor_b32 v17, v17, v4
    v_lshl_add_u32 v{vDW}, v17, 4, v16
    v_lshrrev_b32 v16, 3, v2
    s_lshl_b32 s18, s3, 3
    v_add_u32 v16, s18, v16            ; row = 8w + (l>>3)
    v_lshlrev_b32 v16, 11, v16
    v_add_u32 v17, s17, v3
    v_and_b32 v17, 7, v17
    v_and_b32 v18, 7, v2
    v_xor_b32 v17, v17, v18
    v_lshl_add_u32 v{vDX}, v17, 4, v16
    s_lshl_b32 s64, s15, 8
    s_lshl_b32 s65, s14, 19
    s_lshl_b32 s66, s3, 10             ; w*1024
    s_waitcnt lgkmcnt(0)""")
    fin_srd(k,[sWG,sWU,sQ])
    vo=[]
    def vneed(tags):
        idx=[i for i,t in enumerate(vo) if t in tags]
        if ("ALL",) in tags: return 0
        return min(63,len(vo)-1-max(idx)) if idx else 63
    def dmaW(i, which):
        vo.append(("W",i))
        k(f"""s_add_u32 m0, s66, {(i&3)*16384 + which*8192}
        s_add_u32 s67, s64, {i*32*F*2}
        buffer_load_dwordx4 v{vDW}, {R4(sWG+4*which)}, s67 offen {o.get('wa','')} lds""")
    def dmaX(j, t):
        vo.append(("X",j))
        k(f"""s_add_u32 m0, s66, {65536+(j%3)*32768+t*8192}
        s_add_u32 s67, s65, {t*131072+j*128}
        buffer_load_dwordx4 v{vDX}, {R4(sQ)}, s67 offen {o.get('xa','')} lds""")
    def groupA_x():
        for j in range(4):
            k(f"""s_add_u32 s17, s15, {j}
            s_and_b32 s17, s17, 3
            s_lshl_b32 s18, s17, 13
            s_add_u32 s18, s18, s66
            s_add_u32 m0, s18, 65536
            s_lshl_b32 s17, s17, 17
            s_add_u32 s67, s65, s17
            buffer_load_dwordx4 v{vDX}, {R4(sQ)}, s67 offen {o.get('xa','')} lds""")
    if o["rot"]:
        k(f"s_bitcmp1_b32 s14, 0\ns_cbranch_scc1 {L('a1')}")
        dmaW(0,0); dmaW(0,1); groupA_x()
        k(f"s_branch {L('a2')}\n{L('a1')}:")
        groupA_x(); dmaW(0,1); dmaW(0,0)
        k(f"{L('a2')}:")
        vo[:]=[("W",0)]*2+[("X",0)]*4
    else:
        dmaW(0,0); dmaW(0,1)
        for t in range(4): dmaX(0,t)
    dmaW(1,0); dmaW(1,1)
    fin_srd(k,[sWS,sDBG,sK,sV,sSH,sWD,sHK,sHD])
    k(f"""
    v_lshrrev_b32 v16, 2, v2
    v_and_b32 v16, 3, v16              ; r
    v_lshl_add_u32 v17, v3, 3, v16     ; 8g + r
    v_lshlrev_b32 v17, 8, v17
    v_and_b32 v18, 3, v2
    v_lshl_add_u32 v17, v18, 3, v17
    v_and_b32 v18, 1, v3
    v_lshl_add_u32 v16, v18, 2, v16    ; f = r | (g&1)<<2
    s_and_b32 s17, s3, 3
    s_lshl_b32 s17, s17, 1             ; fq*2
    v_xor_b32 v18, s17, v16
    v_lshl_add_u32 v{vWa[0]}, v18, 5, v17
    v_xor_b32 v{vWa[1]}, 32, v{vWa[0]}
    s_lshr_b32 s17, s3, 2              ; th
    s_lshl_b32 s17, s17, 14
    s_add_u32 s17, s17, 65536
    v_lshlrev_b32 v16, 7, v4
    v_add_u32 v16, s17, v16
    v_lshrrev_b32 v17, 1, v4
    v_xor_b32 v17, v17, v3
    v_lshl_add_u32 v{vX[0][0]}, v17, 4, v16
    v_xor_b32 v{vX[0][1]}, 64, v{vX[0][0]}
    v_add_u32 v{vX[1][0]}, 0x10000, v{vX[0][0]}
    v_add_u32 v{vX[1][1]}, 0x10000, v{vX[0][1]}""")
    if o["pf3"]:
        vo.append(("P",))
        k(f"""s_cmp_lt_u32 s3, 4
        s_cselect_b32 s96, s{sWG}, s{sWU}
        s_cselect_b32 s97, s{sWG+1}, s{sWU+1}
        s_mov_b32 s98, {hex(D*F*2)}
        s_mov_b32 s99, 0x20000
        s_sub_u32 s17, s2, 32
        s_lshl_b32 s17, s17, 2
        s_and_b32 s18, s3, 3
        s_add_u32 s17, s17, s18
        s_lshl_b32 s17, s17, 13
        s_add_u32 s17, s17, 384
        v_and_b32 v16, 7, v2
        v_lshlrev_b32 v16, 10, v16
        buffer_load_dword v{vDUM}, v16, s[96:99], s17 offen""")
    for i in range(128): k(f"v_mov_b32 v{ACC+i}, 0")
    for i in range(16): k(f"v_mov_b32 v{CS+i}, 0")
    for i in range(4): k(f"v_mov_b32 v{16+i}, 0x3f803f80")
    k(f"""s_lshr_b32 s68, s3, 2
    s_lshl_b32 s69, s14, 1
    s_add_u32 s69, s69, s68
    s_lshl_b32 s68, s68, 5
    s_add_u32 s68, s68, s14
    s_add_u32 s68, s68, 16
    s_cmp_eq_u32 s69, 14
    s_cselect_b32 s68, 15, s68
    s_cmp_eq_u32 s69, 15
    s_cselect_b32 s69, 16, s69""")
    def rdW(i, mt, q):
        off=(i&3)*16384+(mt>>1)*8192+q*1024; r=WF[i&1]+4*mt+2*q
        k(f"ds_read_b64_tr_b16 v[{r}:{r+1}], v{vWa[mt&1]} offset:{off}")
    def rdX(i, nt):
        r=XF+4*nt; b=(i>>1)%3
        k(f"ds_read_b128 v[{r}:{r+3}], v{vX[b>>1][i&1]} offset:{(b&1)*32768+nt*2048}")
    k(f"s_waitcnt vmcnt({vneed([('W',0),('X',0)])})\ns_barrier")
    stamp(1)
    for mt in range(4):
        rdW(0,mt,0); rdW(0,mt,1)
    for nt in range(8): rdX(0,nt)
    def mfma(nt,mt,st):
        k(f"v_mfma_f32_16x16x32_bf16 {acc(nt,mt)}, v[{WF[st]+4*mt}:{WF[st]+4*mt+3}], v[{XF+4*nt}:{XF+4*nt+3}], {acc(nt,mt)}")
    def half(i, dm=(), pre=(), extra=(), vf=None, nvf=0, afterbar=None, vper=1):
        h=i&1; reads=i<31
        k(f"s_waitcnt lgkmcnt({8-bp})")
        pre=list(pre)
        grp=lambda nt: list(range(4)) if (nt%2==0 or not o["snake"]) else [3,2,1,0]
        left=[nvf]
        def filler():
            if vf and left[0]>0:
                x=vf.pop(0); left[0]-=1
                if isinstance(x,tuple): vo.append(("S",)); k(x[1])
                else: k(x)
        for nt in range(bp):
            for mt in grp(nt):
                mfma(nt,mt,h)
                for _ in range(-(-len(pre)//max(1,(4*bp)))):
                    if pre: pre.pop(0)()
        while pre: pre.pop(0)()
        hs=o.get("hs"); slot=None
        if hs is not None and hs<=i<hs+16:
            j=i-hs; slot=(4+j) if j<10 else (96+j-10); k("s_memtime s[18:19]")
        if reads:
            k(f"s_waitcnt vmcnt({vneed([('W',i+1),('X',(i+1)>>1)]+list(extra))}) lgkmcnt(0)\ns_barrier")
        else: k("s_waitcnt lgkmcnt(0)")
        if slot is not None: k(f"s_mov_b32 s{slot}, s18")
        if afterbar: afterbar()
        pend=[]
        if reads:
            for mt in range(4): pend.append(lambda mt=mt: (rdW(i+1,mt,0), rdW(i+1,mt,1)))
            for nt in range(bp): pend.append(lambda nt=nt: rdX(i+1,nt))
        dm=list(dm)
        nslots=(8-bp)*4
        first=len(pend)+1
        dslots=[first+(j*(nslots-first))//max(1,len(dm)) for j in range(len(dm))]
        s=0
        for nt in range(bp,8):
            for mt in grp(nt):
                mfma(nt,mt,h)
                for _ in range(vper): filler()
                if pend: pend.pop(0)()
                while dm and s>=dslots[0]:
                    dm.pop(0)(); dslots.pop(0)
                s+=1
            if reads:
                if pend: pend.append(lambda nt=nt: rdX(i+1,nt))
                else: rdX(i+1,nt)
        while pend: pend.pop(0)()
        while dm: dm.pop(0)()
    def regular(i):
        dm=[]
        if i+4<32: dm += [lambda: dmaW(i+4,0), lambda: dmaW(i+4,1)]
        j=(i+5)//2 if i&1 else i//2+2
        if j<16:
            t0=0 if i&1 else 2
            dm += [lambda: dmaX(j,t0), lambda: dmaX(j,t0+1)]
        return dm
    def tagged(f,tag):
        def g(): vo.append(tag); f()
        return g
    def poll():
        k(f"""s_lshl_b32 s17, s15, 3
        s_add_u32 s17, s17, 32
        v_and_b32 v{vDUM}, 7, v2
        v_add_u32 v{vDUM}, s17, v{vDUM}
        v_cmp_gt_u32 vcc, 32, v2
        s_mov_b32 s72, {WS_LFLAG}
        s_nop 0
        v_cndmask_b32 v{vDUM}, v{vDUM}, v2, vcc
        v_lshlrev_b32 v{vDUM}, 7, v{vDUM}
        s_cmp_lg_u32 s3, 0
        s_cbranch_scc1 {L('nopoll')}
        buffer_load_dword v{vDX}, v{vDUM}, {R4(sWS)}, s72 offen sc1
        {L('nopoll')}:""")
    def check():
        if o.get("nochk"): return
        spin(k, L('c'), f"buffer_load_dword v{vDX}, v{vDUM}, {R4(sWS)}, s72 offen sc1", f"v_cmp_ne_u32 vcc, 1, v{vDX}\ns_nop 1\ns_cmp_eq_u64 vcc, 0", 1 if o["conv"] and o.get("pfk",True) else 0)
    LREC=24576; LCS=28672
    def recdma():
        k(f"""s_and_b32 s17, s3, 3
        s_lshl_b32 s17, s17, 10
        s_add_u32 m0, s17, {LREC}
        s_lshl_b32 s18, s14, 12
        s_add_u32 s17, s17, s18
        s_add_u32 s17, s17, {WS_REC}
        v_lshlrev_b32 v15, 4, v2
        s_cmp_ge_u32 s3, 4
        s_cbranch_scc1 {L('norec')}
        buffer_load_dwordx4 v15, {R4(sWS)}, s17 offen sc1 lds
        {L('norec')}:""")
    def pfK():
        k(f"""s_lshl_b32 s17, s2, 14
        s_lshl_b32 s18, s3, 11
        s_add_u32 s17, s17, s18
        v_lshlrev_b32 v28, 7, v4
        buffer_load_dword v28, v28, {R4(sHK)}, s17 offen""")
    NC=o["NC"]; ool=[]
    def xmf(i):
        def f():
            k(f"s_cmp_eq_u32 s{69 if i<15 else 68}, {i}\ns_cbranch_scc1 {L('y%d'%i)}\n{L('x%d'%i)}:")
            ool.append(f"{L('y%d'%i)}:\n"+"\n".join(f"v_mfma_f32_16x16x32_bf16 v[{CS+4*mt}:{CS+4*mt+3}], v[{WF[i&1]+4*mt}:{WF[i&1]+4*mt+3}], v[16:19], v[{CS+4*mt}:{CS+4*mt+3}]" for mt in range(4))+f"\ns_branch {L('x%d'%i)}")
        return f
    def csaddr(base):
        k(f"""s_and_b32 s18, s3, 3
        s_lshl_b32 s18, s18, 5
        s_lshl_b32 s19, s15, 7
        s_add_u32 s18, s18, s19
        s_lshl_b32 s18, s18, 2
        s_add_u32 s18, s18, {base}
        s_add_u32 s19, s18, {F*4}""")
    def publish():
        csaddr(WS_PART)
        k(f"""s_mul_i32 s17, s69, {2*F*4}
        s_add_u32 s18, s18, s17
        v_and_b32 v24, 1, v4
        v_lshlrev_b32 v24, 6, v24
        v_lshl_add_u32 v24, v3, 4, v24
        v_and_b32 v25, 2, v4
        v_mul_u32_u24 v25, {F*2}, v25
        v_add_u32 v24, v24, v25
        s_mov_b32 vcc_lo, 0x00020002
        s_mov_b32 vcc_hi, 0x00020002""")
        for r in range(4): k(f"v_cndmask_b32 v{20+r}, v{CS+r}, v{CS+4+r}, vcc")
        k("s_mov_b32 vcc_lo, 0x00040004\ns_mov_b32 vcc_hi, 0x00040004")
        for r in range(4): k(f"v_cndmask_b32 v{20+r}, v{20+r}, v{CS+8+r}, vcc")
        k("s_mov_b32 vcc_lo, 0x00080008\ns_mov_b32 vcc_hi, 0x00080008")
        for r in range(4): k(f"v_cndmask_b32 v{20+r}, v{20+r}, v{CS+12+r}, vcc")
        vo.append(("S",))
        k(f"""s_mov_b32 exec_lo, 0x000f000f
        s_mov_b32 exec_hi, 0x000f000f
        buffer_store_dwordx4 v[20:23], v24, {R4(sWS)}, s18 offen sc1
        s_mov_b64 exec, -1""")
    def csig():
        k(f"""s_lshl_b32 s70, s15, 3
        s_add_u32 s70, s70, s14
        s_lshl_b32 s70, s70, 7
        s_add_u32 s70, s70, {WS_LFLAG+32*128}""")
        setflag(k, L('csig'), "s70", 26)
    def zpoll():
        k(f"""v_mov_b32 v30, 0
        s_cmp_lg_u32 s3, 0
        s_cbranch_scc1 {L('nozp')}
        buffer_load_dword v31, v30, {R4(sDBG)}, 0 offen sc1
        {L('nozp')}:""")
    def zcheck():
        spin(k, L('z'), f"buffer_load_dword v31, v30, {R4(sDBG)}, 0 offen sc1", "v_readfirstlane_b32 s17, v31\ns_nop 0\ns_cmp_ge_u32 s17, 32", None)
    def gather():
        k(f"""s_and_b32 s18, s3, 3
        s_lshl_b32 s18, s18, 7
        s_lshl_b32 s19, s15, 9
        s_add_u32 s18, s18, s19
        s_lshr_b32 s19, s3, 2
        s_mul_i32 s19, s19, {F*4}
        s_add_u32 s18, s18, s19
        s_add_u32 s18, s18, {WS_PART}
        s_add_u32 s19, s18, {8*2*F*4}
        v_lshrrev_b32 v20, 3, v2
        v_mul_u32_u24 v20, {2*F*4}, v20
        v_and_b32 v21, 7, v2
        v_lshl_add_u32 v20, v21, 4, v20""")
        for j in range(2):
            vo.append(("G",))
            k(f"buffer_load_dwordx4 v[{24+4*j}:{27+4*j}], v20, {R4(sWS)}, s{18+j} offen sc1")
    dpp=[f"v_add_f32 v{24+r}, v{24+r}, v{28+r}" for r in range(4)]
    dpp+=[f"v_add_f32_dpp v{24+r}, v{24+r}, v{24+r} row_ror:8 row_mask:0xf bank_mask:0xf" for r in range(4)]
    for sw in ("v_permlane16_swap_b32","v_permlane32_swap_b32"):
        dpp+=[f"v_mov_b32 v{28+r}, v{24+r}" for r in range(4)]
        dpp+=[f"{sw} v{24+r}, v{28+r}" for r in range(4)]
        dpp+=[f"v_add_f32 v{24+r}, v{24+r}, v{28+r}" for r in range(4)]
    dpp+=[f"s_lshl_b32 s17, s3, 7\nv_lshl_add_u32 v20, v21, 4, s17", f"ds_write_b128 v20, v[24:27] offset:{LCS}"]
    sigdone=[False]; cdm=[]
    for i in range(32):
        dm=regular(i); pre=[]; extra=[]; vf=None; nvf=0; ab=None
        if i==0:
            pre=[lambda: dmaW(2,0), lambda: dmaW(2,1)]+[lambda t=t: dmaX(1,t) for t in range(4)]
            dm=[lambda: dmaW(3,0), lambda: dmaW(3,1), lambda: dmaX(2,0), lambda: dmaX(2,1)]+dm
        if i<NC: dm=dm+[xmf(i)]
        if i==NC and not o.get("nopub"): dm=[publish]+dm
        if i==NC-4: dm=[zpoll]+dm
        if i==NC: pre=[zcheck]
        if o.get("nopub"): sigdone[0]=True
        if i>NC and not sigdone[0] and vneed([("W",i+1),("X",(i+1)>>1)])<=vneed([("S",)]):
            ab=csig; sigdone[0]=True
        if i==28: dm=[poll]+([tagged(pfK,("P",))] if o["conv"] and o.get("pfk",True) else [])
        if i==29: pre=[check]; dm=[recdma, gather]
        if i==30 and o["conv"] and o.get("cearly",False):
            def csetup():
                vo.extend([("C",)]*2); cdm.extend(conv_dma_list(k, L, 'g', o))
            dm=[csetup]+[tagged(lambda: cdm.pop(0)(),("C",)) for _ in range(5)]
        if i==31:
            ab=lambda: k(f"s_waitcnt vmcnt({vneed([('G',)])})")
            vf=dpp; nvf=len(dpp)
            if o["conv"] and o.get("cearly",False): dm=[tagged(lambda: cdm.pop(0)(),("C",)) for _ in range(5)]
        half(i, dm=dm, pre=pre, extra=extra, vf=vf, nvf=nvf, afterbar=ab, vper=(2 if i==31 else 1))
    assert sigdone[0] and not dpp
    stamp(2, tail=1)
    k(f"""v_lshlrev_b32 v13, 4, v4
    s_lshr_b32 s17, s3, 2
    s_lshl_b32 s17, s17, 11
    v_add_u32 v13, s17, v13
    v_lshlrev_b32 v14, 4, v3
    s_and_b32 s17, s3, 3
    s_lshl_b32 s17, s17, 7
    v_add_u32 v14, s17, v14
    s_waitcnt lgkmcnt(0)
    s_barrier""")
    for mt in range(4): k(f"ds_read_b128 v[{CS+4*mt}:{CS+4*mt+3}], v14 offset:{LCS+(mt>>1)*512+(mt&1)*64}")
    for nt in range(8): k(f"ds_read_b128 v[{REC+4*nt}:{REC+4*nt+3}], v13 offset:{LREC+nt*256}")
    if o["conv"] and not o.get("cearly",False):
        cdm = conv_dma_list(k, L, 'g', o)
        vo.extend([("C",)]*2)
    k(f"""
    s_and_b32 s17, s3, 3
    s_lshl_b32 s18, s15, 2
    s_add_u32 s18, s18, s17            ; fb32
    s_lshl_b32 s18, s18, 7
    s_lshl_b32 s17, s14, 4
    s_add_u32 s18, s18, s17
    s_lshr_b32 s17, s3, 2
    s_lshl_b32 s17, s17, 3
    s_add_u32 s18, s18, s17
    s_lshl_b32 s18, s18, 10
    s_add_u32 s64, s18, {WS_H}
    s_add_u32 s65, s64, 4096
    v_lshlrev_b32 v15, 4, v2
    s_waitcnt lgkmcnt(0)""")
    T=64; pst=[]
    for nt in range(8):
        o4=96+4*nt; R=REC+4*nt
        for q in range(2):
            g=ACC+(nt*4+q)*4; u=ACC+(nt*4+2+q)*4; t=T+8*((2*nt+q)&3); cg=CS+4*q; cu=CS+4*(2+q)
            P=lambda r: f"v[{r}:{r+1}]"
            k(f"""v_pk_fma_f32 {P(g)}, {P(cg)}, {P(R)}, {P(g)} op_sel_hi:[1,0,1]
            v_pk_fma_f32 {P(g+2)}, {P(cg+2)}, {P(R)}, {P(g+2)} op_sel_hi:[1,0,1]
            v_pk_fma_f32 {P(u)}, {P(cu)}, {P(R)}, {P(u)} op_sel_hi:[1,0,1]
            v_pk_mul_f32 {P(t)}, {P(g)}, {P(g)}
            v_pk_mul_f32 {P(t+2)}, {P(g+2)}, {P(g+2)}
            v_pk_fma_f32 {P(u+2)}, {P(cu+2)}, {P(R)}, {P(u+2)} op_sel_hi:[1,0,1]
            v_pk_fma_f32 {P(t)}, {P(t)}, {P(R+2)}, {P(R)} op_sel:[0,0,1] op_sel_hi:[1,0,1]
            v_pk_fma_f32 {P(t+2)}, {P(t+2)}, {P(R+2)}, {P(R)} op_sel:[0,0,1] op_sel_hi:[1,0,1]
            v_pk_mul_f32 {P(u)}, {P(u)}, {P(g)}
            v_pk_mul_f32 {P(t)}, {P(t)}, {P(g)}
            v_pk_mul_f32 {P(t+2)}, {P(t+2)}, {P(g+2)}
            v_pk_mul_f32 {P(u+2)}, {P(u+2)}, {P(g+2)}
            v_exp_f32 v{t}, v{t}
            v_exp_f32 v{t+1}, v{t+1}
            v_exp_f32 v{t+2}, v{t+2}
            v_exp_f32 v{t+3}, v{t+3}""")
            if cdm:
                for _ in range(o.get("dps",1)):
                    if cdm: vo.append(("C",)); cdm.pop(0)()
            else: k("s_nop 0")
            k(f"""v_pk_fma_f32 {P(t)}, {P(t)}, {P(R+2)}, {P(R+2)} op_sel:[0,1,1] op_sel_hi:[1,1,1]
            v_pk_fma_f32 {P(t+2)}, {P(t+2)}, {P(R+2)}, {P(R+2)} op_sel:[0,1,1] op_sel_hi:[1,1,1]
            v_rcp_f32 v{t}, v{t}
            v_rcp_f32 v{t+1}, v{t+1}
            v_rcp_f32 v{t+2}, v{t+2}
            v_rcp_f32 v{t+3}, v{t+3}
            s_nop 0
            v_pk_mul_f32 {P(t)}, {P(t)}, {P(u)}
            v_pk_mul_f32 {P(t+2)}, {P(t+2)}, {P(u+2)}
            v_cvt_pk_bf16_f32 v{o4+2*q}, v{t}, v{t+1}
            v_cvt_pk_bf16_f32 v{o4+2*q+1}, v{t+2}, v{t+3}""")
        if not o.get("nohst"): pst.append(f"buffer_store_dwordx4 v[{o4}:{o4+3}], v15, {R4(sWS)}, s{64+(nt>>2)} offen offset:{(nt&3)*1024} {o['hsc']}")
        if not cdm:
            for _ in range(2):
                if pst: vo.append(("H",)); k(pst.pop(0))
    while pst: vo.append(("H",)); k(pst.pop(0))
    stamp(3, tail=(2 if o.get('tailst')==1 else None))
    if o["conv"]: k(f"s_waitcnt vmcnt({vneed([('C',)])})\ns_branch {L('conv')}")
    else: k(f"s_branch {L('fin')}")
    for b_ in ool: k(b_)
    k(f"{L('helper')}:")
    if o.get("nohelp"):
        k("s_waitcnt lgkmcnt(0)"); fin_srd(k,[sWS,sDBG])
        atomic1(k, L('sigA'), "0")
        for i in (1,2,3): stamp(i)
        k(f"s_branch {L('fin')}")
    else: helper(k, L, o, stamp)
    if o["conv"]:
        k(f"{L('conv')}:")
        conv_main(k, L, o, stamp)
    if o["conv"]: k(f"s_branch {L('fin')}\n{L('idle')}:")
    if o["pfd"] and o["conv"]:
        k(f"""s_lshl_b32 s16, s2, 2
        s_add_u32 s16, s16, s3
        s_sub_u32 s16, s16, 4
        s_mul_i32 s16, s16, {56*128}
        v_min_u32 v8, 55, v2
        v_lshlrev_b32 v8, 7, v8
        buffer_load_dword v9, v8, {R4(sWD)}, s16 offen""")
    if o.get("prew",0) and o["conv"]:
        k(f"""s_cmp_ge_u32 s2, 32
        s_cbranch_scc1 {L('fin')}
        s_load_dwordx2 s[96:97], s[0:1], {KA['out']}
        s_lshl_b32 s16, s2, 2
        s_add_u32 s16, s16, s3
        s_sub_u32 s16, s16, 4             ; 0..127
        s_lshl_b32 s17, s16, 15
        s_lshl_b32 s16, s16, 16
        s_add_u32 s16, s16, {WS_XCH}
        v_lshlrev_b32 v8, 4, v2
        v_mov_b32 v12, -1
        v_mov_b32 v13, -1
        v_mov_b32 v14, -1
        v_mov_b32 v15, -1
        s_waitcnt lgkmcnt(0)
        s_and_b32 s97, s97, 0xffff
        s_mov_b32 s98, 0x400000
        s_mov_b32 s99, 0x20000
        s_mov_b32 s18, 8
        {L('pw')}:""")
        if o.get("prew",0)&1:
            for j in range(8):
                k(f"buffer_store_dwordx4 v[12:15], v8, {R4(sWS)}, s16 offen offset:{(j&3)*1024} {o.get('pwa','')}")
                if j&3==3: k("s_add_u32 s16, s16, 4096")
        if o.get("prew",0)&2:
            for j in range(4): k(f"buffer_store_dwordx4 v[12:15], v8, s[96:99], s17 offen offset:{j*1024} {o.get('pwa','')}")
            k("s_add_u32 s17, s17, 4096")
        k(f"""s_sub_u32 s18, s18, 1
        s_cmp_lg_u32 s18, 0
        s_cbranch_scc1 {L('pw')}""")
    k(f"{L('fin')}:")
    if stamps:
        k("s_waitcnt vmcnt(0)")
        stamp(4)
        k(f"""s_waitcnt lgkmcnt(0)
        s_lshl_b32 s17, s2, 3
        s_add_u32 s17, s17, s3
        s_lshl_b32 s17, s17, 6
        s_add_u32 s17, s17, {WS_STAMP}""")
        for i in range(5):
            k(f"v_mov_b32 v{20+2*i}, s{76+4*i}\nv_mov_b32 v{21+2*i}, s{78+4*i}")
        k(f"""v_mov_b32 v3, 0
        buffer_store_dwordx4 v[20:23], v3, {R4(sWS)}, s17 offen
        buffer_store_dwordx4 v[24:27], v3, {R4(sWS)}, s17 offen offset:16
        buffer_store_dwordx2 v[28:29], v3, {R4(sWS)}, s17 offen offset:32""")
        if o.get("hs") is not None:
            for j in range(16): k(f"v_mov_b32 v{32+j}, s{(4+j) if j<10 else (96+j-10)}")
            k(f"s_add_u32 s17, s17, {3<<20}")
            for j in range(4): k(f"buffer_store_dwordx4 v[{32+4*j}:{35+4*j}], v3, {R4(sWS)}, s17 offen offset:{16*j}")
    k(f"{L('end')}:\ns_endpgm")
    return k, (name, 256, 512, 163840)

def atomic1(k, lab, soff, vr=16):
    k(f"""s_cmp_lg_u32 s3, 0
    s_cselect_b64 exec, 0, 1
    s_cbranch_execz {lab}
    v_mov_b32 v{vr}, 1
    v_mov_b32 v{vr+1}, 0
    buffer_atomic_add v{vr}, v{vr+1}, {R4(sDBG)}, {soff} offen sc1
    {lab}:
    s_mov_b64 exec, -1""")
def setflag(k, lab, soff, vr):
    k(f"""s_cmp_lg_u32 s3, 0
    s_cselect_b64 exec, 0, 1
    s_cbranch_execz {lab}
    v_mov_b32 v{vr}, 1
    v_mov_b32 v{vr+1}, 0
    buffer_store_dword v{vr}, v{vr+1}, {R4(sWS)}, {soff} offen sc1
    {lab}:
    s_mov_b64 exec, -1""")
def spin(k, lab, load, test, vm, sleep=32):
    k(f"""s_cmp_lg_u32 s3, 0
    s_cbranch_scc1 {lab}ok""")
    if vm is not None: k(f"s_waitcnt vmcnt({vm})")
    k(f"""{test}
    s_cbranch_scc1 {lab}ok
    s_mov_b32 s19, 0
    {lab}sp:
    s_add_u32 s19, s19, 1
    s_cmp_ge_u32 s19, 0x20000
    s_cbranch_scc1 {lab}ok
    s_sleep {sleep}
    {load}
    s_waitcnt vmcnt(0)
    {test}
    s_cbranch_scc0 {lab}sp
    {lab}ok:""")

def conv_dma_list(k, L, tag, o={}):
    lab=L('ok2'+tag)
    if tag=='h' and not o.get('nohpoll'):
        k(f"""v_and_b32 v6, 31, v2
        v_lshlrev_b32 v6, 7, v6
        s_mov_b32 s72, {WS_LFLAG}
        v_mov_b32 v7, 0
        s_nop 0""")
        spin(k, lab, f"buffer_load_dword v7, v6, {R4(sWS)}, s72 offen sc1", "v_cmp_ne_u32 vcc, 1, v7\ns_nop 1\ns_cmp_eq_u64 vcc, 0", None, sleep=o.get("hsleep",48))
        k("s_barrier")
    k(f"""
    s_and_b32 s71, s3, 3
    s_lshl_b32 s18, s2, 2
    s_add_u32 s18, s18, s71            ; channel
    s_mul_i32 s17, s71, {CH_LDS}
    s_add_u32 s17, s17, 98304
    s_cmp_eq_u32 s71, 3
    s_cselect_b32 s71, 0, s17
    s_lshl_b32 s73, s18, 12            ; channel*4096
    v_add_u32 v0, v3, v4
    v_subrev_u32 v0, 15, v0
    v_lshlrev_b32 v0, 1, v0
    v_cmp_gt_i32 vcc, 0, v0
    v_add_u32 v0, s73, v0
    s_lshl_b32 s17, s18, 1
    v_cndmask_b32 v0, v0, -1, vcc
    v_mov_b32 v1, s17
    buffer_load_ushort v0, v0, {R4(sHK)}, 0 offen
    buffer_load_ushort v1, v1, {R4(sHD)}, 0 offen
    s_lshr_b32 s17, s3, 2
    s_lshl_b32 s17, s17, 11
    s_add_u32 s74, s71, s17
    s_add_u32 s75, s73, s17
    v_lshlrev_b32 v15, 4, v2""")
    out=[]
    for i in range(2):
        for c in range(4):
            out.append(lambda i=i,c=c: k(f"""s_add_u32 m0, s74, {c*HC+32+i*1024}
            s_add_u32 s17, s75, {(0 if o.get('fakeal') else 2*(c+1))+i*1024}
            buffer_load_dwordx4 v15, {R4(sHK)}, s17 offen {o.get('ka','')} lds"""))
    for i in range(2):
        out.append(lambda i=i: k(f"""s_add_u32 m0, s74, {4*HC+i*1024}
        s_add_u32 s17, s75, {WS_UR+i*1024}
        buffer_load_dwordx4 v15, {R4(sWS)}, s17 offen sc1 lds"""))
    return out

def conv_main(k, L, o, stamp):
    AF=32; BF=64; ACC=96
    k(f"""
    v_mov_b32 v10, 0
    v_mov_b32 v11, 0
    v_lshlrev_b32 v9, 3, v2
    v_add_u32 v9, s71, v9
    v_mul_u32_u24 v14, {HC}, v3
    v_lshl_add_u32 v14, v4, 1, v14
    v_add_u32 v14, s71, v14
    s_cmp_ge_u32 s3, 4
    s_cbranch_scc1 {L('cskip')}
    ds_write_b64 v9, v[10:11] offset:{4*HC+4096}
    ds_write_b16 v14, v0
    {L('cskip')}:
    v_and_b32 v9, 3, v4
    v_mul_u32_u24 v9, {HC}, v9
    v_and_b32 v10, 12, v4
    v_lshl_add_u32 v10, v3, 3, v10
    v_lshl_add_u32 v9, v10, 1, v9
    v_add_u32 v12, s71, v9
    v_lshlrev_b32 v9, 5, v4
    v_sub_u32 v9, {4*HC+480}, v9
    v_lshl_add_u32 v9, v3, 4, v9
    v_add_u32 v13, s71, v9""")
    for i in range(32): k(f"v_mov_b32 v{ACC+i}, 0")
    k(f"""s_waitcnt lgkmcnt(0)
    s_barrier
    s_cmp_ge_u32 s3, 4
    s_cbranch_scc1 {L('idle')}""")
    if o.get("tailst"): stamp(None, tail=(3 if o["tailst"]==1 else 2))
    def rdA(a,r):
        k(f"ds_read_b64 v[{AF+4*a}:{AF+4*a+1}], v12 offset:{512*a+64*r}")
        k(f"ds_read_b64 v[{AF+4*a+2}:{AF+4*a+3}], v12 offset:{512*a+64*r+8}")
    def rdB(b,r):
        k(f"ds_read_b128 v[{BF+4*b}:{BF+4*b+3}], v13 offset:{512*(7-b)+64*r}")
    order=[]
    def R(kind,i,r):
        (rdA if kind=="A" else rdB)(i,r); order.extend([(kind,i,r)]*(2 if kind=="A" else 1))
    def wait(tags):
        last=max(i for i,t in enumerate(order) if t in tags)
        return min(15,len(order)-1-last)
    R("B",0,0); R("A",7,0)
    for i in range(1,8): R("A",7-i,0); R("B",i,0)
    done=set()
    for r in range(8):
        for a in range(7,-1,-1):
            for b in range(0,8-a):
                tags=[t for t in (("A",a,r),("B",b,r)) if t not in done]
                if tags:
                    n=wait(tags); k(f"s_waitcnt lgkmcnt({n})")
                    for t in order[:len(order)-n]: done.add(t)
                j=a+b
                k(f"v_mfma_f32_16x16x32_bf16 v[{ACC+4*j}:{ACC+4*j+3}], v[{AF+4*a}:{AF+4*a+3}], v[{BF+4*b}:{BF+4*b+3}], v[{ACC+4*j}:{ACC+4*j+3}]")
                if a==0 and r<7: R("B",b,r+1)
            if r<7: R("A",a,r+1)
    if o.get("tailst")==2: stamp(None, tail=3)
    k(f"""v_lshlrev_b32 v9, 5, v4
    v_lshl_add_u32 v9, v3, 3, v9
    v_sub_u32 v10, {4*HC+2*(2044-256*7)}, v9
    v_add_u32 v10, s71, v10""")
    for j in range(8): k(f"ds_read_b64 v[{AF+2*j}:{AF+2*j+1}], v10 offset:{512*(7-j)}")
    k(f"""v_lshlrev_b32 v8, 16, v1
    v_lshlrev_b32 v9, 5, v4
    v_lshrrev_b32 v10, 1, v3
    v_lshl_add_u32 v9, v10, 4, v9
    v_and_b32 v10, 1, v3
    v_lshl_add_u32 v9, v10, 9, v9
    s_add_u32 s17, s73, {WS_ZT}
    s_waitcnt lgkmcnt(0)""")
    for j in range(8):
        a=ACC+4*j; u=AF+2*j
        k(f"""v_and_b32 v16, 0xffff0000, v{u+1}
        v_lshlrev_b32 v17, 16, v{u+1}
        v_and_b32 v18, 0xffff0000, v{u}
        v_lshlrev_b32 v19, 16, v{u}
        v_fmac_f32 v{a}, v16, v8
        v_fmac_f32 v{a+1}, v17, v8
        v_fmac_f32 v{a+2}, v18, v8
        v_fmac_f32 v{a+3}, v19, v8""")
        o4=BF+4*(j>>1)+2*(j&1)
        k(f"""v_cvt_pk_bf16_f32 v{o4}, v{a}, v{a+1}
        v_cvt_pk_bf16_f32 v{o4+1}, v{a+2}, v{a+3}""")
        if j&1:
            b=BF+4*(j>>1)
            k(f"""s_nop 1
            v_permlane16_swap_b32 v{b}, v{b+2}
            v_permlane16_swap_b32 v{b+1}, v{b+3}
            buffer_store_dwordx4 v[{b}:{b+3}], v9, {R4(sWS)}, s17 offen offset:{(j>>1)*1024}""")

def helper(k, L, o, stamp):
    ha=o["ha"]; NC=o["NC"]; NR=64-2*NC
    XB=128; CB=32
    k(f"""s_lshl_b32 s14, s2, 3
    s_add_u32 s14, s14, s3
    s_lshl_b32 s15, s14, 14
    v_lshrrev_b32 v5, 3, v2
    v_and_b32 v6, 7, v2
    v_lshlrev_b32 v7, 11, v5
    v_lshl_add_u32 v7, v6, 4, v7
    s_waitcnt lgkmcnt(0)""")
    fin_srd(k,[sQ,sWS,sDBG])
    k(f"""s_cmp_lg_u32 s3, 0
    s_cbranch_scc1 {L('noclr')}
    s_lshl_b32 s16, s2, 10
    s_add_u32 s16, s16, {WS_LFLAG}
    v_lshlrev_b32 v12, 4, v2
    v_mov_b32 v8, 0
    v_mov_b32 v9, 0
    v_mov_b32 v10, 0
    v_mov_b32 v11, 0
    buffer_store_dwordx4 v[8:11], v12, {R4(sWS)}, s16 offen sc1
    s_waitcnt vmcnt(0)
    {L('noclr')}:""")
    atomic1(k, L('sigZ'), "0")
    for j in range(16): k(f"buffer_load_dwordx4 v[{XB+4*j}:{XB+4*j+3}], v7, {R4(sQ)}, s15 offen offset:{j*128}")
    fin_srd(k,[s for s,_,_ in SRDS if s not in (sQ,sWS,sDBG)])
    if o.get("tlb"):
        sh=o["tlb"]
        k(f"""s_load_dwordx2 s[96:97], s[0:1], {KA['out']}
        v_lshlrev_b32 v8, {sh}, v2
        s_waitcnt lgkmcnt(0)
        s_and_b32 s97, s97, 0xffff
        s_mov_b32 s98, 0x400000
        s_mov_b32 s99, 0x20000""")
        lst=[(R4(sWS),32<<20),(R4(sWG),D*F*2),(R4(sWU),D*F*2),(R4(sWD),D*F*2),(R4(sHK),4<<20),(R4(sK),4<<20),(R4(sV),4<<20),("s[96:99]",4<<20),(R4(sHD),2048)]
        n=0
        for j,(srd,sz) in enumerate(lst):
            k(f"s_cmp_lg_u32 s3, {j%8}\ns_cbranch_scc1 {L('tlb%d'%j)}")
            if sz<(64<<sh): k(f"v_min_u32 v9, {hex(sz-4)}, v8")
            for off in range(0,sz,64<<sh):
                k(f"s_mov_b32 s16, {off}\nbuffer_load_dword v10, v{9 if sz<(64<<sh) else 8}, {srd}, s16 offen")
            k(f"{L('tlb%d'%j)}:")
    k(f"""s_cmp_lt_u32 s2, 14
    s_cselect_b32 s96, s{sWG}, s{sWU}
    s_cselect_b32 s97, s{sWG+1}, s{sWU+1}
    s_mov_b32 s98, {hex(D*F*2)}
    s_mov_b32 s99, 0x20000
    s_cselect_b32 s16, 0, 14
    s_sub_u32 s16, s2, s16
    s_lshl_b32 s15, s16, 9
    s_mul_i32 s16, s3, {2*F*2}
    s_add_u32 s15, s15, s16
    s_cmp_ge_u32 s2, 28
    s_cselect_b32 s15, {hex(D*F*2)}, s15
    v_lshrrev_b32 v196, 5, v2
    v_mul_u32_u24 v196, {F*2}, v196
    v_and_b32 v197, 31, v2
    v_lshl_add_u32 v196, v197, 4, v196""")
    for n in range(NR):
        k(f"s_add_u32 s18, s15, {(2*NC+n)*16*F*2}\nbuffer_load_dwordx4 v[{CB+4*n}:{CB+4*n+3}], v196, s[96:99], s18 offen {ha}")
    k(f"""
    s_lshl_b32 s16, s3, 7
    v_lshl_add_u32 v197, v6, 4, s16
    v_lshlrev_b32 v198, 2, v197
    s_lshl_b32 s17, s2, 6
    v_lshl_add_u32 v196, v5, 3, s17    ; t0
    v_lshl_add_u32 v197, v196, 11, v197 ; offset (t0,c)
    v_lshlrev_b32 v196, 1, v196
    v_lshlrev_b32 v199, 15, v6
    v_sub_u32 v196, v199, v196
    v_add_u32 v196, 4080, v196
    s_lshl_b32 s68, s3, 18
    s_add_u32 s68, s68, {WS_UR}
    v_subrev_u32 v199, {3*2048}, v197""")
    for e in range(4): k(f"buffer_load_dwordx4 v[{16+4*e}:{19+4*e}], v198, {R4(sSH)}, 0 offen offset:{16*e}")
    KB=(120,32); VB=(164,76)
    def loads(p):
        for i in range(11):
            if i<3: k(f"v_add_u32 v254, {i*2048+p*1024}, v199\nbuffer_load_dwordx4 v[{KB[p]+4*i}:{KB[p]+4*i+3}], v254, {R4(sK)}, 0 offen {ha}")
            else: k(f"s_mov_b32 s16, {(i-3)*2048+p*1024}\nbuffer_load_dwordx4 v[{KB[p]+4*i}:{KB[p]+4*i+3}], v197, {R4(sK)}, s16 offen {ha}")
        for i in range(8):
            k(f"s_mov_b32 s16, {i*2048+p*1024}\nbuffer_load_dwordx4 v[{VB[p]+4*i}:{VB[p]+4*i+3}], v197, {R4(sV)}, s16 offen {ha}")
    k(f"s_mov_b32 s16, 0x3f803f80\nv_mov_b32 v8, 0\nv_mov_b32 v9, 0")
    for j in range(16):
        k(f"s_waitcnt vmcnt({15-j+NR+4})")
        for d in range(4): k(f"v_dot2c_f32_bf16 v{8+(d&1)}, s16, v{XB+4*j+d}")
    def red8(v):
        k(f"""s_nop 2
        v_add_f32_dpp v{v}, v{v}, v{v} quad_perm:[1,0,3,2] row_mask:0xf bank_mask:0xf
        s_nop 1
        v_add_f32_dpp v{v}, v{v}, v{v} quad_perm:[2,3,0,1] row_mask:0xf bank_mask:0xf
        s_nop 1
        v_add_f32_dpp v{v}, v{v}, v{v} row_half_mirror row_mask:0xf bank_mask:0xf""")
    k("s_nop 2\nv_add_f32 v8, v8, v9")
    red8(8)
    k("""v_mul_f32 v8, 0xba800000, v8      ; -mean
    v_mov_b32 v10, 0
    v_mov_b32 v11, 0""")
    for j in range(64):
        t=200+2*(j&3)
        k(f"""v_lshlrev_b32 v{t}, 16, v{XB+j}
        v_and_b32 v{t+1}, 0xffff0000, v{XB+j}
        v_pk_add_f32 v[{t}:{t+1}], v[{t}:{t+1}], v[8:9] op_sel_hi:[1,0]
        v_pk_fma_f32 v[10:11], v[{t}:{t+1}], v[{t}:{t+1}], v[10:11]""")
    loads(0)
    k("v_add_f32 v10, v10, v11")
    red8(10)
    k("v_mul_f32 v10, 0x3a800000, v10")
    bf16r(k,8); bf16r(k,10)
    k("v_add_f32 v10, 0x3727c5ac, v10")
    bf16r(k,10)
    k("v_sqrt_f32 v10, v10\ns_nop 0")
    bf16r(k,10)
    k(f"""v_rcp_f32 v13, v10
    v_mul_f32 v11, v10, v10            ; q = sd^2
    v_fma_f32 v14, -v10, v13, 1.0
    v_fmac_f32 v13, v14, v13           ; rinv
    v_mul_f32 v9, {hex(C0)}, v13         ; A
    v_mul_f32 v10, v13, v13
    v_mul_f32 v10, v10, v13
    v_mul_f32 v10, {hex(C1)}, v10        ; B
    v_sub_f32 v12, 0, v8               ; mean
    s_lshl_b32 s15, s14, 7
    s_add_u32 s16, s15, {WS_REC}
    s_lshr_b32 s15, s15, 1
    s_add_u32 s15, s15, {WS_STATS}
    v_lshlrev_b32 v200, 4, v5
    v_lshlrev_b32 v201, 3, v5
    v_cmp_eq_u32 vcc, 0, v6
    s_and_saveexec_b64 s[18:19], vcc
    buffer_store_dwordx4 v[8:11], v200, {R4(sWS)}, s16 offen sc1
    buffer_store_dwordx2 v[12:13], v201, {R4(sWS)}, s15 offen
    s_mov_b64 exec, s[18:19]
    s_lshl_b32 s16, s14, 10
    s_add_u32 s16, s16, {WS_XFLAG}
    v_lshlrev_b32 v200, 4, v2
    v_mov_b32 v204, 0
    v_mov_b32 v205, 0
    v_mov_b32 v206, 0
    v_mov_b32 v207, 0
    buffer_store_dwordx4 v[204:207], v200, {R4(sWS)}, s16 offen
    s_mov_b32 s16, 0x00003f80
    s_mov_b32 s17, 0x3f800000
    s_waitcnt vmcnt(22)""")
    stamp(1)
    for i in range(8): k(f"v_mov_b32 v{208+i}, 0")
    for n in range(NR):
        for d in range(4):
            k(f"v_dot2c_f32_bf16 v{208+2*d}, s16, v{CB+4*n+d}\nv_dot2c_f32_bf16 v{209+2*d}, s17, v{CB+4*n+d}")
    k("v_lshlrev_b32 v7, 5, v0")
    loads(1)
    k("""ds_write_b128 v7, v[208:211]
    ds_write_b128 v7, v[212:215] offset:16""")
    def kvpass(p):
        for d in range(4):
            a=16+4*d
            k(f"""v_lshlrev_b32 v200, 16, v{a}
            v_lshlrev_b32 v201, 16, v{a+2}
            v_and_b32 v202, 0xffff0000, v{a}
            v_and_b32 v203, 0xffff0000, v{a+2}
            v_lshlrev_b32 v204, 16, v{a+1}
            v_lshlrev_b32 v205, 16, v{a+3}
            v_and_b32 v206, 0xffff0000, v{a+1}
            v_and_b32 v207, 0xffff0000, v{a+3}""")
            if p==0: k(f"s_movk_i32 s16, 0x1000\nbuffer_load_dwordx4 v[{a}:{a+3}], v198, {R4(sSH)}, s16 offen offset:{16*d}")
            for i in range(11):
                k(f"v_lshlrev_b32 v{208+2*i}, 16, v{KB[p]+4*i+d}\nv_and_b32 v{209+2*i}, 0xffff0000, v{KB[p]+4*i+d}")
            for t in range(8):
                r=232+2*t
                k(f"v_pk_mul_f32 v[{r}:{r+1}], v[{208+2*t}:{209+2*t}], v[206:207]")
                for j in (2,1,0):
                    k(f"v_pk_fma_f32 v[{r}:{r+1}], v[{208+2*(t+3-j)}:{209+2*(t+3-j)}], v[{200+2*j}:{201+2*j}], v[{r}:{r+1}]")
            for t in range(8):
                r=232+2*t; vv=VB[p]+4*t+d
                k(f"""v_lshlrev_b32 v250, 16, v{vv}
                v_and_b32 v251, 0xffff0000, v{vv}
                v_pk_mul_f32 v[{r}:{r+1}], v[{r}:{r+1}], v[250:251]""")
            for c in range(2):
                ob=8 if c==0 else 12
                for e in range(4):
                    k(f"v_cvt_pk_bf16_f32 v{ob+e}, v{232+2*(7-2*e)+c}, v{232+2*(6-2*e)+c}")
                k(f"""s_add_u32 s16, s68, {(2*d+c)*4096 + p*512*4096}
                buffer_store_dwordx4 v[{ob}:{ob+3}], v196, {R4(sWS)}, s16 offen {o.get('ua','sc1')}""")
    k("s_waitcnt vmcnt(19) lgkmcnt(0)")
    kvpass(0)
    stamp(2)
    k(f"s_waitcnt vmcnt(2)\nv_mov_b32 v252, 0\nbuffer_load_dword v253, v252, {R4(sDBG)}, 0 offen sc1")
    kvpass(1)
    k(f"""s_barrier
    s_cmp_ge_u32 s2, 28
    s_cbranch_scc1 {L('nocs2')}
    s_cmp_ge_u32 s3, 4
    s_cbranch_scc1 {L('nocs2')}
    v_lshlrev_b32 v7, 2, v0""")
    for p in range(8): k(f"ds_read2st64_b32 v[{64+2*p}:{65+2*p}], v7 offset0:{8*p} offset1:{8*p+4}")
    k("s_waitcnt lgkmcnt(0)")
    for p in range(1,16): k(f"v_add_f32 v64, v64, v{64+p}")
    k(f"""s_lshl_b32 s16, s2, 10
    s_add_u32 s16, s16, {WS_PART+15*2*F*4}
    buffer_store_dword v64, v7, {R4(sWS)}, s16 offen sc1
    {L('nocs2')}:
    s_waitcnt vmcnt(0)
    s_barrier""")
    spin(k, L('hz'), f"buffer_load_dword v253, v252, {R4(sDBG)}, 0 offen sc1", "v_readfirstlane_b32 s17, v253\ns_nop 0\ns_cmp_ge_u32 s17, 32", None)
    k(f"s_lshl_b32 s16, s2, 7\ns_add_u32 s16, s16, {WS_LFLAG}")
    setflag(k, L('sigA'), "s16", 16)
    stamp(3)
    if not o["conv"]:
        k(f"s_branch {L('fin')}"); return
    lst=conv_dma_list(k,L,'h',o)
    if o.get('hexit'):
        k(f"s_branch {L('fin')}"); return
    for f in lst: f()
    k("s_waitcnt vmcnt(0)")
```

```python
from common import *
WS_STAMP2 = 65<<20
WS_XFLAG = WS_FLAG + (1<<20)
WS_XCH   = 40<<20
sWD,sOUT,sQ,sWS = 20,24,28,32
def R4(s): return f"s[{s}:{s+3}]"
def k2_kernel(name="ffn2_kernel", stamps=False, opts=None):
    o = dict(NB=3, HD=2, bp=1, wa="", ha="", sleep=4)
    if opts: o.update(opts)
    NB=o["NB"]; HD=o["HD"]; bp=o["bp"]; NS=14
    k = K(name, vgpr=256)
    L=lambda s: f"{name}_{s}"
    ACC=64; WF=128; HF=160; vWa=[[16+8*b+m for m in range(8)] for b in range(2)]
    vDW=8; vH=(9,15); ZOFF=NB*32768
    XR=208; ST=216
    fake=""
    if o.get("fakeh"): fake+=f"""v_lshrrev_b32 v5, 3, v2
    v_cmp_eq_u32 vcc, 3, v5
    v_add_u32 v5, {o['fakeh']}, v{vH[0]}
    v_add_u32 v6, {o['fakeh']}, v{vH[1]}
    v_cndmask_b32 v{vH[0]}, v{vH[0]}, v5, vcc
    v_cndmask_b32 v{vH[1]}, v{vH[1]}, v6, vcc
    """
    if o.get("fakew"): fake+="""s_and_b32 s12, s15, 3
    s_cmp_eq_u32 s12, 1
    s_cselect_b32 s12, 256, 0
    s_add_u32 s40, s40, s12
    """
    def acc(mt,nt): r=ACC+(mt*2+nt)*4; return f"v[{r}:{r+3}]"
    hreg=lambda s,j,nt: HF+(s%HD)*16+j*8+nt*4
    def stamp(i, epi=None):
        if o.get("epist"):
            if epi is None and i not in (0,): return
            if epi is not None: i=epi
        elif i is None: return
        if stamps:
            k(f"""s_memtime s[{60+4*i}:{61+4*i}]
            s_memrealtime s[{62+4*i}:{63+4*i}]""")
    k(f"""
    s_cmp_ge_u32 s2, 256
    s_cbranch_scc1 {L('end')}""")
    stamp(0)
    for s_,key in ((sWD,'wd'),(sWS,'ws'),(sOUT,'out'),(sQ,'q')): k(f"s_load_dwordx2 s[{s_}:{s_+1}], s[0:1], {KA[key]}")
    k(f"""
    v_lshrrev_b32 v1, 6, v0
    v_and_b32 v2, 63, v0
    v_lshrrev_b32 v3, 4, v2            ; g
    v_readfirstlane_b32 s3, v1
    v_and_b32 v4, 15, v2
    s_and_b32 s18, s2, 1               ; kh
    s_bfe_u32 s12, s2, 0x10001
    s_lshl_b32 s12, s12, 3
    s_bfe_u32 s13, s2, 0x30003
    s_add_u32 s14, s12, s13            ; tb 0..15
    s_bfe_u32 s12, s2, 0x10002
    s_lshl_b32 s12, s12, 2
    s_lshr_b32 s13, s2, 6
    s_add_u32 s15, s12, s13            ; nb 0..7
    s_lshr_b32 s16, s3, 2              ; kg
    s_and_b32 s17, s3, 3               ; tq
    s_lshl_b32 s12, s3, 2
    v_add_u32 v5, s12, v3
    v_and_b32 v6, 7, v5
    v_lshlrev_b32 v6, 1, v6
    v_xor_b32 v6, v6, v4
    v_lshlrev_b32 v5, 11, v5
    v_lshl_add_u32 v{vDW}, v6, 4, v5
    s_mul_i32 s40, s18, {1792*2048}
    s_lshl_b32 s12, s15, 8
    s_add_u32 s40, s40, s12
    s_lshl_b32 s42, s3, 10
    s_mul_i32 s12, s18, 56
    s_add_u32 s12, s12, s16
    s_lshl_b32 s12, s12, 7
    s_lshl_b32 s13, s14, 3
    s_add_u32 s12, s12, s13
    s_lshl_b32 s13, s17, 1
    s_add_u32 s12, s12, s13
    s_lshl_b32 s12, s12, 10
    s_add_u32 s41, s12, {WS_H}
    s_lshl_b32 s12, s16, 10
    v_lshl_add_u32 v{vH[0]}, v2, 4, s12
    v_xor_b32 v{vH[1]}, 0x400, v{vH[0]}
    {fake}
    s_waitcnt lgkmcnt(0)""")
    for s_,n in ((sWD,D*F*2),(sWS,WS_SIZE)): k(f"s_and_b32 s{s_+1}, s{s_+1}, 0xffff\ns_mov_b32 s{s_+2}, {hex(n)}\ns_mov_b32 s{s_+3}, 0x20000")
    vo=[]
    def vneed(tags):
        idx=[i for i,t in enumerate(vo) if t in tags]
        return min(63,len(vo)-1-max(idx))
    def dmaW(s,t):
        vo.append(("W",s))
        k(f"""s_add_u32 m0, s42, {(s%NB)*32768+t*8192}
        s_add_u32 s43, s40, {(s*128+t*32)*2048}
        buffer_load_dwordx4 v{vDW}, {R4(sWD)}, s43 offen {o['wa']} lds""")
    def ldH(s,j):
        k(f"s_add_u32 s44, s41, {(s*4+2*j)*131072}")
        for nt in range(2):
            vo.append(("H",s,j)); r=hreg(s,j,nt)
            k(f"buffer_load_dwordx4 v[{r}:{r+3}], v{vH[nt]}, {R4(sWS)}, s44 offen {o['ha']}")
    for t in range(4): dmaW(0,t)
    ldH(0,0)
    for s_,n in ((sOUT,4194304),(sQ,4194304)): k(f"s_and_b32 s{s_+1}, s{s_+1}, 0xffff\ns_mov_b32 s{s_+2}, {hex(n)}\ns_mov_b32 s{s_+3}, 0x20000")
    k(f"""
    v_lshrrev_b32 v5, 2, v2
    v_and_b32 v5, 3, v5
    v_lshl_add_u32 v5, v3, 2, v5       ; row = 4g + r
    v_and_b32 v6, 7, v5
    v_lshlrev_b32 v6, 5, v6
    v_lshl_add_u32 v6, v5, 8, v6
    v_and_b32 v5, 3, v2
    v_lshl_add_u32 v10, v5, 3, v6
    s_lshl_b32 s12, s16, 13
    v_add_u32 v6, s12, v10
    s_lshl_b32 s12, s18, 7
    v_xor_b32 v6, s12, v6""")
    for m in range(8):
        k(f"v_xor_b32 v{vWa[0][m]}, {m<<5}, v6")
        k(f"v_add_u32 v{vWa[1][m]}, 0x10000, v{vWa[0][m]}")
    for i in range(64): k(f"v_mov_b32 v{ACC+i}, 0")
    ldH(0,1)
    k(f"s_waitcnt vmcnt({vneed([('W',0)])})\ns_barrier")
    stamp(1)
    def rdW(s,j,mt):
        b=s%NB; off=(b&1)*32768+j*16384; r=WF+4*mt
        k(f"ds_read_b64_tr_b16 v[{r}:{r+1}], v{vWa[b>>1][mt]} offset:{off}")
        k(f"ds_read_b64_tr_b16 v[{r+2}:{r+3}], v{vWa[b>>1][mt]} offset:{off+4096}")
    for mt in range(8): rdW(0,0,mt)
    pro=[lambda s=s,t=t: dmaW(s,t) for s in range(1,NB) for t in range(4)]
    pro=pro[:4]+[lambda s=s,j=j: ldH(s,j) for s in range(1,HD) for j in range(2)]+pro[4:]
    def mfma(s,j,mt,nt):
        r=hreg(s,j,nt)
        k(f"v_mfma_f32_16x16x32_bf16 {acc(mt,nt)}, v[{WF+4*mt}:{WF+4*mt+3}], v[{r}:{r+3}], {acc(mt,nt)}")
    def epi_loads():
        k(f"""; z tile (kept 64 channels x 128 tokens), x, stats
        v_lshlrev_b32 v5, 1, v3
        v_xor_b32 v5, v5, v4
        v_lshlrev_b32 v5, 4, v5
        v_lshl_add_u32 v5, v3, 12, v5
        v_xor_b32 v6, 0x80, v5
        s_lshl_b32 s45, s15, 1
        s_add_u32 s45, s45, s18
        s_lshl_b32 s12, s45, 6
        s_lshl_b32 s13, s3, 3
        s_add_u32 s12, s12, s13
        s_lshl_b32 s12, s12, 12
        s_lshl_b32 s13, s14, 8
        s_add_u32 s12, s12, s13
        s_add_u32 s12, s12, {WS_ZT}
        s_add_u32 s13, s12, {4*4096}
        s_lshl_b32 s43, s3, 11
        s_add_u32 m0, s43, {ZOFF}
        s_lshl_b32 s47, s45, 7
        buffer_load_dwordx4 v5, {R4(sWS)}, s12 offen lds
        s_add_u32 m0, s43, {ZOFF+1024}
        s_lshl_b32 s12, s14, 7
        buffer_load_dwordx4 v6, {R4(sWS)}, s13 offen lds
        s_lshl_b32 s13, s17, 5
        s_add_u32 s12, s12, s13
        s_lshl_b32 s13, s16, 4
        s_add_u32 s12, s12, s13
        v_add_u32 v5, s12, v4
        v_lshlrev_b32 v6, 3, v5
        s_mov_b32 s13, {WS_STATS}
        buffer_load_dwordx2 v[{ST}:{ST+1}], v6, {R4(sWS)}, s13 offen
        v_lshlrev_b32 v5, 11, v5
        v_lshl_add_u32 v11, v3, 3, v5      ; token*2048 + g*8""")
        for mt in range(4): k(f"buffer_load_dwordx2 v[{XR+2*mt}:{XR+2*mt+1}], v11, {R4(sQ)}, s47 offen offset:{mt*32}")
        vo.extend([("E",)]*7)
    lorder=[("W",0,0,mt) for mt in range(8) for _ in range(2)]
    def lneed(tags):
        idx=[i for i,t in enumerate(lorder) if t in tags]
        return min(15,len(lorder)-1-max(idx))
    def RD(s,j,mt): rdW(s,j,mt); lorder.extend([("W",s,j,mt)]*2)
    ldone=set()
    for s in range(NS):
        for j in range(2):
            k(f"; ---- stage {s} k-step {j}")
            last=(s==NS-1 and j==1)
            nxt=(s,1) if j==0 else (s+1,0)
            dm=[]
            if s==0 and j==0: dm=list(pro)
            pend=[]
            first=True
            for mt in range(8):
                if j==1 and mt==bp and not last:
                    k(f"s_waitcnt vmcnt({vneed([('W',s+1)])}) lgkmcnt(0)\ns_barrier")
                    ldone.update(lorder)
                    pend=[lambda m=m: RD(nxt[0],nxt[1],m) for m in range(bp)]
                    if s+NB<NS: dm+=[lambda t=t: dmaW(s+NB,t) for t in range(2)]
                    if s==NS-2: dm+=[epi_loads]
                if j==0 and mt==0 and s>0 and s-1+NB<NS: dm+=[lambda t=t: dmaW(s-1+NB,t) for t in (2,3)]
                w=[]
                if first: w.append(f"vmcnt({vneed([('H',s,j)])})"); first=False
                if ("W",s,j,mt) not in ldone:
                    n=lneed([("W",s,j,mt)]); w.append(f"lgkmcnt({n})"); ldone.update(lorder[:len(lorder)-n])
                if w: k("s_waitcnt "+" ".join(w))
                for nt in ((0,1) if mt%2==0 else (1,0)):
                    mfma(s,j,mt,nt)
                    if pend: pend.pop(0)()
                    elif dm and (mt%2==1 or len(dm)>(8-mt)//2+1): dm.pop(0)()
                if not last and (j==0 or mt>=bp):
                    if pend: pend.append(lambda m=mt: RD(nxt[0],nxt[1],m))
                    else: RD(nxt[0],nxt[1],mt)
            while pend: pend.pop(0)()
            while dm: dm.pop(0)()
            if s+HD<NS: ldH(s+HD,j)
    stamp(2, epi=1)
    k(f"""v_lshlrev_b32 v5, 4, v2
    s_lshl_b32 s12, s3, 13
    v_add_u32 v6, s12, v5
    s_xor_b32 s12, s12, {4<<13}
    v_add_u32 v7, s12, v5
    s_lshl_b32 s48, s2, 3
    s_add_u32 s48, s48, s3
    s_xor_b32 s49, s48, 8
    s_lshl_b32 s50, s48, 12
    s_add_u32 s50, s50, {WS_XCH}
    s_lshl_b32 s51, s49, 12
    s_add_u32 s51, s51, {WS_XCH}
    s_lshl_b32 s48, s48, 7
    s_add_u32 s48, s48, {WS_XFLAG}
    s_lshl_b32 s49, s49, 7
    s_add_u32 s49, s49, {WS_XFLAG}
    s_waitcnt vmcnt(0)
    s_barrier""")
    for mt in (4,5,6,7,0,1,2,3): k(f"ds_write_b128 v6, {acc(mt,1)} offset:{mt*1024}")
    k("s_waitcnt lgkmcnt(0)\ns_barrier")
    for m in range(4): k(f"ds_read_b128 v[{128+4*m}:{131+4*m}], v7 offset:{(4+m)*1024}")
    for m in range(4): k(f"ds_read_b128 v[{144+4*m}:{147+4*m}], v7 offset:{m*1024}")
    k(f"""s_lshl_b32 s12, s17, 1
    s_add_u32 s12, s12, s16
    s_lshl_b32 s12, s12, 5
    v_xor_b32 v14, s12, v10
    v_add_u32 v14, {ZOFF}, v14""")
    for m in range(4): k(f"ds_read_b64_tr_b16 v[{160+2*m}:{161+2*m}], v14 offset:{m*4096}")
    stamp(None, epi=2)
    def addhalf(dst, base):
        for m in range(4):
            for i in range(0,4,2):
                a=ACC+(base+m)*8+i
                k(f"v_pk_add_f32 v[{dst+4*m+i}:{dst+4*m+i+1}], v[{dst+4*m+i}:{dst+4*m+i+1}], v[{a}:{a+1}]")
    def sends():
        for m in range(4): k(f"buffer_store_dwordx4 v[{128+4*m}:{131+4*m}], v5, {R4(sWS)}, s50 offen offset:{m*1024} sc1")
    k("s_waitcnt lgkmcnt(8)"); addhalf(128,4); sends(); k("s_waitcnt lgkmcnt(4)"); addhalf(144,0)
    k("s_waitcnt lgkmcnt(0)")
    for m in range(4):
        xr=XR+2*m; zr=160+2*m; X=64+4*m; S_=80+4*m
        k(f"""v_lshlrev_b32 v{X}, 16, v{xr}
        v_and_b32 v{X+1}, 0xffff0000, v{xr}
        v_lshlrev_b32 v{X+2}, 16, v{xr+1}
        v_and_b32 v{X+3}, 0xffff0000, v{xr+1}
        v_lshlrev_b32 v96, 16, v{zr}
        v_and_b32 v97, 0xffff0000, v{zr}
        v_lshlrev_b32 v98, 16, v{zr+1}
        v_and_b32 v99, 0xffff0000, v{zr+1}
        v_pk_add_f32 v[{S_}:{S_+1}], v[{X}:{X+1}], v[{ST}:{ST+1}] op_sel_hi:[1,0] neg_lo:[0,1] neg_hi:[0,1]
        v_pk_add_f32 v[{S_+2}:{S_+3}], v[{X+2}:{X+3}], v[{ST}:{ST+1}] op_sel_hi:[1,0] neg_lo:[0,1] neg_hi:[0,1]
        v_pk_mul_f32 v[96:97], v[96:97], v[{ST}:{ST+1}] op_sel:[0,1] op_sel_hi:[1,1]
        v_pk_mul_f32 v[98:99], v[98:99], v[{ST}:{ST+1}] op_sel:[0,1] op_sel_hi:[1,1]
        v_pk_mul_f32 v[{S_}:{S_+1}], v[{S_}:{S_+1}], v[96:97]
        v_pk_mul_f32 v[{S_+2}:{S_+3}], v[{S_+2}:{S_+3}], v[98:99]""")
    k(f"""
    v_mov_b32 v12, 1
    v_mov_b32 v13, 0
    s_waitcnt vmcnt(0)""")
    stamp(None, epi=3)
    k(f"""s_mov_b64 exec, 1
    buffer_store_dword v12, v13, {R4(sWS)}, s48 offen sc1
    s_mov_b64 exec, -1""")
    k(f"""s_mov_b32 s19, 0
    {L('sp')}:
    buffer_load_dword v12, v13, {R4(sWS)}, s49 offen sc1
    s_add_u32 s19, s19, 1
    s_waitcnt vmcnt(0)
    v_readfirstlane_b32 s12, v12
    s_cmp_ge_u32 s19, 0x40000
    s_cbranch_scc1 {L('spok')}
    s_cmp_eq_u32 s12, 1
    s_cbranch_scc1 {L('spok')}
    s_sleep {o['sleep']}
    s_branch {L('sp')}
    {L('spok')}:""")
    stamp(3, epi=4)
    for m in range(4): k(f"buffer_load_dwordx4 v[{128+4*m}:{131+4*m}], v5, {R4(sWS)}, s51 offen offset:{m*1024} sc1")
    k("s_mov_b32 s12, 0xbfb8aa3b\ns_mov_b32 s13, 0xbfb8aa3b")
    for m in range(4):
        a=144+4*m; t=100+4*m; X=64+4*m; S_=80+4*m
        k(f"""s_waitcnt vmcnt({3-m + m})
        v_pk_add_f32 v[{a}:{a+1}], v[{a}:{a+1}], v[{128+4*m}:{129+4*m}]
        v_pk_add_f32 v[{a+2}:{a+3}], v[{a+2}:{a+3}], v[{130+4*m}:{131+4*m}]
        v_pk_mul_f32 v[{t}:{t+1}], v[{a}:{a+1}], s[12:13]
        v_pk_mul_f32 v[{t+2}:{t+3}], v[{a+2}:{a+3}], s[12:13]
        v_pk_mul_f32 v[{S_}:{S_+1}], v[{S_}:{S_+1}], v[{a}:{a+1}]
        v_exp_f32 v{t}, v{t}
        v_exp_f32 v{t+1}, v{t+1}
        v_exp_f32 v{t+2}, v{t+2}
        v_exp_f32 v{t+3}, v{t+3}
        v_pk_mul_f32 v[{S_+2}:{S_+3}], v[{S_+2}:{S_+3}], v[{a+2}:{a+3}]
        v_pk_add_f32 v[{t}:{t+1}], v[{t}:{t+1}], 1.0 op_sel_hi:[1,0]
        v_pk_add_f32 v[{t+2}:{t+3}], v[{t+2}:{t+3}], 1.0 op_sel_hi:[1,0]
        v_rcp_f32 v{t}, v{t}
        v_rcp_f32 v{t+1}, v{t+1}
        v_rcp_f32 v{t+2}, v{t+2}
        v_rcp_f32 v{t+3}, v{t+3}
        s_nop 0
        v_pk_fma_f32 v[{X}:{X+1}], v[{S_}:{S_+1}], v[{t}:{t+1}], v[{X}:{X+1}]
        v_pk_fma_f32 v[{X+2}:{X+3}], v[{S_+2}:{S_+3}], v[{t+2}:{t+3}], v[{X+2}:{X+3}]
        v_cvt_pk_bf16_f32 v{120+2*m}, v{X}, v{X+1}
        v_cvt_pk_bf16_f32 v{121+2*m}, v{X+2}, v{X+3}
        buffer_store_dwordx2 v[{120+2*m}:{121+2*m}], v11, {R4(sOUT)}, s47 offen offset:{m*32}""")
    if stamps:
        k("s_waitcnt vmcnt(0)")
        stamp(4)
        k(f"""s_waitcnt lgkmcnt(0)
        s_lshl_b32 s12, s2, 3
        s_add_u32 s12, s12, s3
        s_lshl_b32 s12, s12, 6
        s_add_u32 s12, s12, {WS_STAMP2}""")
        for i in range(5):
            k(f"v_mov_b32 v{20+2*i}, s{60+4*i}\nv_mov_b32 v{21+2*i}, s{62+4*i}")
        k(f"""v_mov_b32 v3, 0
        buffer_store_dwordx4 v[20:23], v3, {R4(sWS)}, s12 offen
        buffer_store_dwordx4 v[24:27], v3, {R4(sWS)}, s12 offen offset:16
        buffer_store_dwordx2 v[28:29], v3, {R4(sWS)}, s12 offen offset:32""")
    k(f"{L('end')}:\ns_endpgm")
    return k, (name, 256, 512, ZOFF+16384)
```

```python
import sys
from k1 import k1_kernel
from k2 import k2_kernel
from asmlib import emit
def build(path, stamps=False, o1=None, o2=None):
    ks=[k1_kernel(stamps=stamps,opts=o1), k2_kernel(stamps=stamps,opts=o2)]
    emit(path,[l for _,l in ks],[k for k,_ in ks])
if __name__=="__main__":
    build("v3_st.s", True)
    build("v3.s", False)
```
